```python
import torch

def _softmax(x, axis=-1):
    return torch.softmax(x, dim=axis)
def _gelu(x):
    return torch.nn.functional.gelu(x, approximate="tanh")
def _silu(x):
    return torch.nn.functional.silu(x)
def _sigmoid(x):
    return torch.sigmoid(x)
def _layernorm(x, axis=-1, eps=1e-5):
    m = x.mean(dim=axis, keepdim=True)
    v = x.var(dim=axis, keepdim=True, unbiased=False)
    return (x - m) / torch.sqrt(v + eps)
def _scatter_add(tgt, idx, src, axis=0):
    return tgt.clone().index_add_(axis, idx, src)
def _segment_sum(src, seg, n):
    out = torch.zeros((n,) + src.shape[1:], dtype=src.dtype)
    return out.index_add_(0, seg, src)
def _pad(x, pw):
    flat = tuple(v for pair in reversed(pw) for v in pair)
    return torch.nn.functional.pad(x, flat)

kernel_name = 'parallel_sum__sliding_block__dense_activation_silu__prompt'

def setup_inputs():

    _w = (lambda a: (lambda t: t.to(torch.bfloat16) if t.is_floating_point() else t)(torch.as_tensor(a)))
    def _A_setup():
        B, S, D = 1, 2048, 512
        return {
            "x": _w((lambda *s: torch.randn(*s, dtype=torch.bfloat16) * 0.05)(B, S, D)),
            "wqkv": _w((lambda *s: torch.randn(*s, dtype=torch.bfloat16) * 0.05)(D, 3 * D)),
            "wo": _w((lambda *s: torch.randn(*s, dtype=torch.bfloat16) * 0.05)(D, D)),
        }
    _A_in = _A_setup()

    def _B_setup():
        B, S, D, F = 1, 2048, 512, 1376
        return {
            "x": _w((lambda *s: torch.randn(*s, dtype=torch.bfloat16) * 0.05)(B, S, D)),
            "w1": _w((lambda *s: torch.randn(*s, dtype=torch.bfloat16) * 0.8)(D, F) * (D ** -0.5)),
            "w2": _w((lambda *s: torch.randn(*s, dtype=torch.bfloat16) * 0.8)(F, D) * (F ** -0.5)),
        }
    _B_in = _B_setup()

    return {
        "A_x": _A_in["x"],
        "A_wqkv": _A_in["wqkv"],
        "A_wo": _A_in["wo"],
        "B_x": _B_in["x"],
        "B_w1": _B_in["w1"],
        "B_w2": _B_in["w2"],
    }

def reference(A_x, A_wqkv, A_wo, B_x, B_w1, B_w2):
    def _A_ref(x, wqkv, wo):
        B, S, D = x.shape
        H = 32; Dh = D // H; W = 256
        qkv = (lambda x, *d: x.permute(*d))((x @ wqkv).reshape(B, S, 3, H, Dh), 2, 0, 3, 1, 4)
        q, k, v = qkv[0], qkv[1], qkv[2]
        scores = torch.einsum("bhqd,bhkd->bhqk", q, k) * (Dh ** -0.5)
        idx = torch.arange(S)
        mask = (idx[:, None] - idx[None, :] >= 0) & (idx[:, None] - idx[None, :] < W)
        scores = torch.where(mask[None, None], scores, -1e9)
        p = _softmax(scores, axis=-1)
        o = torch.einsum("bhqk,bhkd->bhqd", p, v)
        return (lambda x, *d: x.permute(*d))(o, 0, 2, 1, 3).reshape(B, S, D) @ wo

    def _B_ref(x, w1, w2):
        h = torch.einsum("bsd,df->bsf", x, w1)
        h = _silu(h)
        out = torch.einsum("bsf,fd->bsd", h, w2)
        return out

    x = A_x
    xn = _layernorm(x, axis=-1)
    return x + _A_ref(xn, A_wqkv, A_wo) + _B_ref(xn, B_w1, B_w2)
```

```python
import re
def regs(tok):
    tok=tok.strip().lstrip('-')
    m=re.fullmatch(r'v\[(\d+):(\d+)\]',tok)
    if m: return list(range(int(m.group(1)),int(m.group(2))+1))
    m=re.fullmatch(r'v(\d+)',tok)
    if m: return [int(m.group(1))]
    return []
def sregs(tok):
    tok=tok.strip()
    m=re.fullmatch(r's\[(\d+):(\d+)\]',tok)
    if m: return list(range(int(m.group(1)),int(m.group(2))+1))
    m=re.fullmatch(r's(\d+)',tok)
    if m: return [int(m.group(1))]
    if tok=='vcc': return ['vcc']
    return []
TRANS=('v_exp_f32','v_rcp_f32','v_rsq_f32','v_log_f32','v_sqrt_f32')
class E:
    def __init__(s):
        s.out=[]; s.pos=0
        s.mf={}
        s.mc={}
        s.va={}
        s.tr={}; s.dot={}; s.st={}; s.sv={}; s.m0=-99; s.ex=-99
    def raw(s,t): s.out.append(t)
    def label(s,n): s.out.append(n+':')
    def nop(s,n):
        while n>0:
            k=min(n,16); s.out.append(f'  s_nop {k-1}'); s.pos+=k; n-=k
    def __call__(s,line):
        line=line.strip()
        op,_,rest=line.partition(' ')
        toks=[t.strip() for t in re.split(r',',rest)] if rest else []
        if toks: toks[-1:]=toks[-1].split()[:1]+toks[-1].split()[1:]
        ismf=op.startswith('v_mfma'); isva=op.startswith('v_') and not ismf
        ismem=op.startswith(('buffer_','ds_','global_'))
        need=0
        def req(p,n):
            nonlocal need
            need=max(need,p+n+1-s.pos)
        rd=[];wr=[]
        if ismf:
            wr=regs(toks[0]); ab=regs(toks[1])+regs(toks[2]); c=regs(toks[3]); rd=ab+c
            for r in rd:
                if r in s.va: req(s.va[r],2)
                if r in s.dot: req(s.dot[r],3)
            for r in ab:
                if r in s.mf: req(s.mf[r][0],s.mf[r][1])
            for r in c+wr:
                if r in s.mf and not (s.mf[r][2]==(op,tuple(c)) and c==wr): req(s.mf[r][0],s.mf[r][1])
            req(s.ex,4)
        elif isva:
            if op.startswith('v_cmp') or op.startswith('v_readfirstlane'):
                rd=[r for t in toks[1:] for r in regs(t)]
            else:
                wr=regs(toks[0]); rd=[r for t in toks[1:] for r in regs(t)]
                if op.startswith(('v_dot2c','v_fmac','v_permlane')): rd+=wr
                if op.startswith('v_permlane'): wr=wr+regs(toks[1])
            for r in rd+wr:
                if r in s.mf: req(s.mf[r][0],s.mf[r][1])
            for r in wr:
                if r in s.mc: req(s.mc[r],7)
                if r in s.st: req(s.st[r],2)
            for r in rd:
                if r in s.tr and op not in TRANS: req(s.tr[r],1)
                if r in s.va and op.startswith('v_permlane'): req(s.va[r],2)
                if r in s.va and op.startswith('v_readfirstlane'): req(s.va[r],1)
            for r in rd+wr:
                if r in s.dot and not (op.startswith('v_dot2c') and r in wr): req(s.dot[r],3)
            for t in toks[1:]:
                for r in sregs(t):
                    if r in s.sv: req(s.sv[r],2)
        elif ismem:
            allr=[r for t in toks for r in regs(t)]
            for r in allr:
                if r in s.mf: req(s.mf[r][0],s.mf[r][1])
                if r in s.dot: req(s.dot[r],3)
                if r in s.tr: req(s.tr[r],1)
            isld=('load' in op or 'read' in op or 'rtn' in op) and 'lds' not in toks
            if isld:
                for r in regs(toks[0]):
                    if r in s.mc: req(s.mc[r],7)
                    if r in s.st: req(s.st[r],2)
            for t in toks:
                for r in sregs(t):
                    if r in s.sv: req(s.sv[r],5)
            if 'lds' in toks: req(s.m0,1)
        else:
            for t in toks[1:]:
                for r in sregs(t):
                    if r in s.sv: req(s.sv[r],2)
            if op.startswith('s_cmp'):
                for r in sregs(toks[0]):
                    if r in s.sv: req(s.sv[r],2)
        if need>0: s.nop(need)
        s.out.append('  '+line)
        p=s.pos; s.pos+=1
        if ismf:
            n=18 if op.endswith('x2_f32') else 8 if '16x16x32' in op else 12
            for r in wr: s.mf[r]=(p,n,(op,tuple(wr)))
            for r in regs(toks[3]): s.mc[r]=p
        elif isva:
            for r in wr:
                s.va[r]=p; s.mf.pop(r,None); s.tr.pop(r,None); s.dot.pop(r,None)
                if op in TRANS: s.tr[r]=p
                if op.startswith('v_dot2c'): s.dot[r]=p
            if op.startswith(('v_cmp','v_readfirstlane')):
                for r in sregs(toks[0]): s.sv[r]=p
        elif ismem:
            if 'store' in op or 'write' in op:
                for t in toks[:2]:
                    for r in regs(t): s.st[r]=p
        else:
            if toks and toks[0]=='m0': s.m0=p
            if toks and toks[0]=='exec': s.ex=p
    def text(s): return '\n'.join(s.out)+'\n'
```

```python
import sys
from emit import E
NAME='parallel_sum__sliding_block__dense_activation_silu__prompt'
opt=dict(stamp=0,map=0)
for a in sys.argv[2:]:
    k,v=a.split('='); opt[k]=int(v)
e=E()
QB,KB,VB,OB,HB=0,2<<20,4<<20,6<<20,8<<20
X,WQ,WO,W1,W2,OUT,DBG,WS=['s[%d:%d]'%(8+4*i,11+4*i) for i in range(8)]
RB,CG,W,TG,KH,ONES,QBI,T0,T1,T2,T3,RB2,CB,KQ,TG2,SID,T4,T5,SCNT='s40 s41 s42 s43 s44 s45 s46 s47 s48 s49 s50 s51 s52 s53 s54 s55 s56 s57 s58'.split()
def v(a,n=1): return 'v%d'%a if n==1 else 'v[%d:%d]'%(a,a+n-1)
nst=[0]
def stamp():
    if opt['stamp']:
        i=nst[0]; nst[0]+=1
        e('s_memtime s[%d:%d]'%(64+2*i,65+2*i)); e('s_waitcnt lgkmcnt(0)')
L,LC,VXA,VWQ,VW1,VT,VR0,VR1,VR2,VL16,VLC16=1,2,4,8,9,10,11,12,13,14,15
XF,ACC,WF,XB=16,80,128,176
SUM,SSQ,CS,NMU,RSTD,TMP=232,233,236,240,241,242
MISC=147456; STAT=155648; RSC=159744; CNT=160768
e('s_cmp_ge_u32 s2, 256'); e('s_cbranch_scc1 L_end')
if opt['stamp']: e('s_memrealtime s[60:61]')
e('s_load_dwordx16 s[64:79], s[0:1], 0'); e('s_load_dwordx2 s[80:81], s[0:1], 64')
e('v_lshrrev_b32 v3, 6, v0'); e('v_and_b32 v1, 63, v0'); e('v_readfirstlane_b32 %s, v3'%W)
e('s_and_b32 %s, s2, 7'%T0); e('s_lshr_b32 %s, s2, 3'%T1)
if opt['map']==0:
    e('s_lshr_b32 %s, %s, 4'%(RB,T1)); e('s_lshl_b32 %s, %s, 1'%(T2,T0)); e('s_add_u32 %s, %s, %s'%(RB,RB,T2)); e('s_and_b32 %s, %s, 15'%(CG,T1))
else:
    e('s_lshr_b32 %s, %s, 3'%(RB,T1)); e('s_lshr_b32 %s, %s, 1'%(T2,T0)); e('s_lshl_b32 %s, %s, 2'%(T2,T2)); e('s_add_u32 %s, %s, %s'%(RB,RB,T2))
    e('s_and_b32 %s, %s, 7'%(CG,T1)); e('s_and_b32 %s, %s, 1'%(T2,T0)); e('s_lshl_b32 %s, %s, 3'%(T2,T2)); e('s_add_u32 %s, %s, %s'%(CG,CG,T2))
e('s_lshr_b32 %s, %s, 3'%(RB2,T1)); e('s_lshl_b32 %s, %s, 2'%(T2,T0)); e('s_add_u32 %s, %s, %s'%(RB2,RB2,T2)); e('s_and_b32 %s, %s, 7'%(CB,T1))
e('s_lshl_b32 %s, %s, 4'%(SID,RB)); e('s_add_u32 %s, %s, %s'%(SID,SID,CG))
e('s_and_b32 %s, %s, 3'%(TG,W)); e('s_lshr_b32 %s, %s, 2'%(KH,W)); e('s_and_b32 %s, %s, 1'%(TG2,W)); e('s_lshr_b32 %s, %s, 1'%(KQ,W))
e('s_lshl_b32 %s, %s, 2'%(QBI,RB)); e('s_add_u32 %s, %s, %s'%(QBI,QBI,TG)); e('s_mov_b32 %s, 0x3f803f80'%ONES)
e('v_lshrrev_b32 v3, 4, v1'); e('v_and_b32 v10, 15, v1'); e('v_xor_b32 v10, v10, v3'); e('v_lshlrev_b32 v10, 4, v10'); e('v_lshl_add_u32 v4, v3, 10, v10')
for i in range(1,4): e('v_xor_b32 v%d, %d, v4'%(4+i,64*i))
e('v_lshrrev_b32 v3, 2, v1'); e('v_and_b32 v10, 3, v1'); e('v_lshlrev_b32 v10, 4, v10')
e('v_mul_u32_u24 v8, 3072, v3'); e('v_add_u32 v8, v8, v10'); e('v_mul_u32_u24 v9, 2752, v3'); e('v_add_u32 v9, v9, v10')
e('s_lshl_b32 %s, %s, 4'%(T0,KH)); e('v_xor_b32 v2, %s, v1'%T0); e('v_lshlrev_b32 v14, 4, v1'); e('v_lshlrev_b32 v15, 4, v2')
e('s_waitcnt lgkmcnt(0)')
sz=[2097152,1572864,524288,1409024,1409024,2097152,256,16<<20]
src=[64,66,68,72,74,76,78,80]
for i in range(8):
    b=8+4*i
    e('s_mov_b32 s%d, s%d'%(b,src[i])); e('s_mov_b32 s%d, s%d'%(b+1,src[i]+1)); e('s_mov_b32 s%d, %d'%(b+2,sz[i])); e('s_mov_b32 s%d, 0x20000'%(b+3))
stamp()
e('s_lshl_b32 %s, %s, 15'%(T0,QBI)); e('s_lshl_b32 %s, %s, 9'%(T1,KH)); e('s_add_u32 %s, %s, %s'%(T0,T0,T1))
e('s_lshl_b32 %s, %s, 13'%(T1,W)); e('s_add_u32 %s, %s, 98304'%(T1,T1)); e('s_mov_b32 m0, %s'%T1); e('s_mov_b32 %s, %s'%(T2,T0))
for i in range(8):
    e('buffer_load_dwordx4 v%d, %s, %s offen lds'%(VXA+(i&3),X,T2)); e('s_add_u32 m0, m0, 1024'); e('s_add_u32 %s, %s, 4096'%(T2,T2))
for i in range(8):
    e('buffer_load_dwordx4 %s, v%d, %s, %s offen offset:256'%(v(XB+4*i,4),VXA+(i&3),X,T0)); e('s_add_u32 %s, %s, 4096'%(T0,T0))
e('s_mul_i32 %s, %s, 3072'%(T4,W))
e('s_lshl_b32 %s, %s, 4'%(T0,KH)); e('s_add_u32 %s, %s, %s'%(T0,T0,TG))
e('s_mul_i32 %s, %s, 49152'%(T2,T0)); e('s_lshl_b32 %s, %s, 6'%(T3,CG)); e('s_add_u32 %s, %s, %s'%(T3,T3,T2)); e('s_add_u32 %s, %s, 2048'%(T3,T3))
e('s_and_b32 %s, %s, 1'%(T5,CG)); e('s_lshl_b32 %s, %s, 10'%(T5,T5)); e('s_add_u32 %s, %s, %s'%(T2,T2,T5))
e('s_lshr_b32 %s, %s, 1'%(T5,CG)); e('s_lshl_b32 %s, %s, 7'%(T5,T5)); e('s_add_u32 %s, %s, %s'%(T2,T2,T5))
for c in range(4):
    e('s_add_u32 m0, %s, %d'%(T4,24576*c)); e('buffer_load_dwordx4 v%d, %s, %s offen lds'%(VWQ,WQ,T2))
    e('s_add_u32 m0, %s, %d'%(T4,24576*c+1024-64)); e('buffer_load_dwordx4 v%d, %s, %s offen offset:64 lds'%(VWQ,WQ,T2))
    e('s_add_u32 m0, %s, %d'%(T4,24576*c+2048)); e('buffer_load_dwordx4 v%d, %s, %s offen lds'%(VWQ,WQ,T3))
    e('s_add_u32 %s, %s, %d'%(T2,T2,4*49152)); e('s_add_u32 %s, %s, %d'%(T3,T3,4*49152))
e('s_mul_i32 %s, %s, 3'%(T5,CG)); e('s_min_u32 %s, %s, 40'%(T5,T5)); e('s_mul_i32 %s, %s, 44032'%(T2,T0)); e('s_lshl_b32 %s, %s, 6'%(T3,T5)); e('s_add_u32 %s, %s, %s'%(T2,T2,T3))
W1R=[98304,98304+24576,49152,49152+24576]
def w1dma(c):
    for j in range(3):
        e('s_add_u32 m0, %s, %d'%(T4,W1R[c]+960*j)); e('buffer_load_dwordx4 v%d, %s, %s offen offset:%d lds'%(VW1,W1,T2,64*j))
    e('s_add_u32 %s, %s, %d'%(T2,T2,4*44032))
e('v_and_b32 v3, 31, v2'); e('v_lshrrev_b32 v10, 5, v1'); e('v_and_b32 v11, 15, v3'); e('v_xor_b32 v11, v11, v10'); e('v_lshlrev_b32 v11, 4, v11')
e('v_lshl_add_u32 v11, v3, 8, v11'); e('v_add_u32 v128, %s, v11'%T1)
for s in range(1,8): e('v_xor_b32 v%d, %d, v128'%(128+s,32*s))
e('v_add_u32 v136, %s, v14'%T1)
e('v_bfe_u32 v3, v1, 2, 2'); e('v_lshl_add_u32 v3, v10, 3, v3'); e('v_lshlrev_b32 v3, 6, v3')
e('v_and_b32 v11, 16, v2'); e('v_lshl_add_u32 v3, v11, 1, v3'); e('v_and_b32 v11, 3, v1'); e('v_lshl_add_u32 v3, v11, 3, v3')
e('s_mul_i32 %s, %s, 12288'%(T0,KH)); e('v_add_u32 v11, %s, v3'%T0); e('v_add_u32 v12, 49152, v11'); e('v_add_u32 v13, 98304, v11')
for r in (SUM,SSQ,CS,CS+1,CS+2,CS+3): e('v_mov_b32 v%d, 0'%r)
e('s_waitcnt vmcnt(20)')
for s in range(8): e('ds_read_b128 %s, v%d'%(v(XF+4*s,4),128+s))
e('s_waitcnt vmcnt(12) lgkmcnt(0)')
for i in range(8): e('ds_write_b128 v136, %s offset:%d'%(v(XB+4*i,4),1024*i))
e('s_waitcnt lgkmcnt(0)')
for s in range(8): e('ds_read_b128 %s, v%d'%(v(XF+32+4*s,4),128+s))
e('s_waitcnt vmcnt(9) lgkmcnt(0)'); e('s_barrier')
stamp()
lab=[0]
def wread(reg,s):
    a=reg[s//4]+(s&3)*3072; b=VR0+a//49152; a%=49152
    for j in range(3):
        for jj in range(2): e('ds_read_b64_tr_b16 %s, v%d offset:%d'%(v(WF+(s&1)*12+4*j+2*jj,2),b,a+1024*j+256*jj))
def gemm1(reg,qkv,hooks):
    wread(reg,0)
    for s in range(16):
        if s in hooks: hooks[s]()
        if s<15: wread(reg,s+1); e('s_waitcnt lgkmcnt(6)')
        else: e('s_waitcnt lgkmcnt(0)')
        for j in range(3):
            a,b=v(WF+(s&1)*12+4*j,4),v(XF+4*s,4)
            if qkv and j==2: a,b=b,a
            e('v_mfma_f32_32x32x16_bf16 %s, %s, %s, %s'%(v(ACC+16*j,16),a,b,v(ACC+16*j,16) if s else '0'))
            if qkv and j<2:
                for i in range(2):
                    r=XF+4*s+2*j+i
                    e('v_dot2c_f32_bf16 v%d, %s, v%d'%(SUM,ONES,r)); e('v_dot2c_f32_bf16 v%d, v%d, v%d'%(SSQ,r,r))
        lab[0]+=1
        e('s_cmp_lg_u32 %s, %d'%(TG,s&3)); e('s_cbranch_scc1 L_cs%d'%lab[0])
        for i in range(4):
            for j in range(3): e('v_dot2c_f32_bf16 v%d, %s, v%d'%(CS+j,ONES,WF+(s&1)*12+4*j+i))
        e.pos-=12
        e.label('L_cs%d'%lab[0])
    e.nop(12)
def bar(n): e('s_waitcnt vmcnt(%d)'%n); e('s_barrier')
def h0():
    w1dma(0); w1dma(1)
    e('v_mov_b32 v3, %d'%CNT); e('v_mov_b32 v10, 0'); e('ds_write_b32 v3, v10'); e('ds_write_b32 v3, v10 offset:4'); e('s_waitcnt lgkmcnt(0)')
gemm1([0,24576,49152,73728],True,{0:h0,3:lambda:bar(12),7:lambda:bar(9),11:lambda:bar(6)})
stamp()
EX,CP=176,200
def exchange(qkv,mid):
    e('s_mul_i32 %s, %s, 6144'%(T0,W)); e('v_add_u32 v3, %s, v15'%T0)
    for j in range(3):
        for i in range(2): e('ds_write_b128 v3, %s offset:%d'%(v(ACC+16*j+8+4*i,4),2048*j+1024*i))
    e('s_lshl_b32 %s, %s, 10'%(T0,W)); e('s_add_u32 %s, %s, %d'%(T0,T0,MISC)); e('v_add_u32 v10, %s, v15'%T0); e('ds_write_b128 v10, %s'%v(CS,4))
    if qkv:
        e('s_lshl_b32 %s, %s, 9'%(T0,W)); e('s_add_u32 %s, %s, %d'%(T0,T0,STAT)); e('v_lshlrev_b32 v10, 3, v2'); e('v_add_u32 v10, %s, v10'%T0); e('ds_write_b64 v10, %s'%v(SUM,2))
        e('v_xor_b32 v10, 2048, v10')
    e('s_xor_b32 %s, %s, 4'%(T0,W)); e('s_mul_i32 %s, %s, 6144'%(T0,T0)); e('v_add_u32 v3, %s, v15'%T0)
    e('s_waitcnt lgkmcnt(0)'); e('s_barrier')
    if qkv: e('ds_read_b64 %s, v10'%v(TMP,2))
    e('v_add_u32 v10, %d, v15'%MISC)
    for w in range(8): e('ds_read_b128 %s, v10 offset:%d'%(v(CP+4*w,4),1024*w))
    for i in range(6): e('ds_read_b128 %s, v3 offset:%d'%(v(EX+4*i,4),1024*i))
    mid()
    if qkv:
        e('s_waitcnt lgkmcnt(14)')
        e('v_add_f32 v%d, v%d, v%d'%(SUM,SUM,TMP)); e('v_add_f32 v%d, v%d, v%d'%(SSQ,SSQ,TMP+1))
        e('v_mov_b32 v%d, v%d'%(TMP,SUM)); e('v_mov_b32 v%d, v%d'%(TMP+1,SSQ))
        e('v_permlane32_swap_b32 v%d, v%d'%(SUM,TMP)); e('v_permlane32_swap_b32 v%d, v%d'%(SSQ,TMP+1))
        e('v_add_f32 v%d, v%d, v%d'%(SUM,SUM,TMP)); e('v_add_f32 v%d, v%d, v%d'%(SSQ,SSQ,TMP+1))
        e('v_mul_f32 v%d, 0xbb000000, v%d'%(NMU,SUM)); e('v_mul_f32 v%d, 0x3b000000, v%d'%(SSQ,SSQ))
        e('v_fma_f32 v%d, -v%d, v%d, v%d'%(SSQ,NMU,NMU,SSQ)); e('v_max_f32 v%d, 0, v%d'%(SSQ,SSQ)); e('v_add_f32 v%d, 0x3727c5ac, v%d'%(SSQ,SSQ))
        e('v_rsq_f32 v%d, v%d'%(RSTD,SSQ))
        e('s_lshl_b32 %s, %s, 7'%(T0,W)); e('s_add_u32 %s, %s, %d'%(T0,T0,RSC)); e('v_and_b32 v10, 31, v2'); e('v_lshlrev_b32 v10, 2, v10'); e('v_add_u32 v10, %s, v10'%T0)
        e('ds_write_b32 v10, v%d'%RSTD)
        e('s_lshl_b32 %s, %s, 6'%(T1,KH)); e('s_add_u32 %s, %s, %s'%(T0,T0,T1)); e('v_lshrrev_b32 v10, 5, v1'); e('v_lshlrev_b32 v10, 4, v10'); e('v_add_u32 v10, %s, v10'%T0)
        e('ds_read_b128 %s, v10'%v(244,4)); e('ds_read_b128 %s, v10 offset:32'%v(248,4))
    e('s_waitcnt lgkmcnt(0)')
    for j in range(3):
        for st in (4,2,1):
            for w in range(st): e('v_add_f32 v%d, v%d, v%d'%(CP+4*w+j,CP+4*w+j,CP+4*(w+st)+j))
        for r in range(8): e('v_add_f32 v%d, v%d, v%d'%(ACC+16*j+r,ACC+16*j+r,EX+8*j+r))
        a,b='v%d'%(CP+j),'v%d'%NMU
        if qkv and j==2: a,b=b,a
        e('v_mfma_f32_32x32x2_f32 %s, %s, %s, %s'%(v(ACC+16*j,16),a,b,v(ACC+16*j,16)))
    for r in range(3): e('v_mov_b32 v%d, 0'%(CS+r))
def m1(): w1dma(2); w1dma(3)
exchange(True,m1)
e('s_and_b32 %s, %s, 1'%(T0,CG)); e('s_cmp_eq_u32 %s, 0'%T0); e('s_cselect_b32 %s, 0x3eb8aa3b, 1.0'%T1); e('v_mul_f32 v%d, %s, v%d'%(TMP,T1,RSTD))
e('s_lshl_b32 %s, %s, 21'%(T0,T0)); e('s_lshl_b32 %s, %s, 15'%(T1,QBI)); e('s_add_u32 %s, %s, %s'%(T0,T0,T1))
e('s_lshr_b32 %s, %s, 1'%(T3,CG)); e('s_lshl_b32 %s, %s, 2'%(T3,T3)); e('s_add_u32 %s, %s, %s'%(T3,T3,KH)); e('s_lshl_b32 %s, %s, 10'%(T3,T3)); e('s_add_u32 %s, %s, %s'%(T0,T0,T3))
e('s_lshl_b32 %s, %s, 1'%(T3,CG)); e('s_add_u32 %s, %s, %s'%(T3,T3,KH)); e('s_lshl_b32 %s, %s, 10'%(T3,T3)); e('s_add_u32 %s, %s, %s'%(T1,T1,T3)); e('s_add_u32 %s, %s, %d'%(T1,T1,VB))
for j in range(3):
    for r in range(8): e('v_mul_f32 v%d, v%d, v%d'%(ACC+16*j+r,ACC+16*j+r,TMP if j<2 else 244+r))
    for r in range(4): e('v_cvt_pk_bf16_f32 v%d, v%d, v%d'%(EX+4*j+r,ACC+16*j+2*r,ACC+16*j+2*r+1))
    if j<2: e('buffer_store_dwordx4 %s, v15, %s, %s offen offset:%d sc1'%(v(EX+4*j,4),WS,T0,2048*j))
    else: e('buffer_store_dwordx4 %s, v15, %s, %s offen sc1'%(v(EX+4*j,4),WS,T1))
stamp()
def flag(val,lbl):
    e('s_mov_b64 exec, 1'); e('v_mov_b32 v3, %s'%SID); e('v_mov_b32 v10, %d'%val); e('buffer_store_byte v10, v3, %s, 0 offen sc1'%DBG); e('s_mov_b64 exec, -1')
def h7():
    bar(0); e('s_cmp_lg_u32 %s, 0'%W); e('s_cbranch_scc1 L_f1'); flag(1,'f1'); e.label('L_f1')
bar(12)
gemm1(W1R,False,{3:lambda:bar(9),7:h7})
stamp()
def poll(name,voff,mask,n):
    e('s_mov_b32 %s, 0'%SCNT); e.label('L_p'+name)
    for i in range(n): e('buffer_load_dwordx4 %s, v%d, %s, 0 offen sc1'%(v(244+4*i,4),voff+i,DBG))
    e('s_waitcnt vmcnt(0)')
    for i in range(1,4*n): e('v_and_b32 v244, v244, v%d'%(244+i))
    e('v_readfirstlane_b32 %s, v244'%T0); e('s_and_b32 %s, %s, 0x%x'%(T0,T0,mask)); e('s_cmp_eq_u32 %s, 0x%x'%(T0,mask)); e('s_cbranch_scc1 L_q'+name)
    e('s_sleep 2'); e('s_add_u32 %s, %s, 1'%(SCNT,SCNT)); e('s_cmp_lt_u32 %s, 0x40000'%SCNT); e('s_cbranch_scc1 L_p'+name); e.label('L_q'+name)
KF,QF=16,52
def VF(i): return 56+4*i if i<6 else 128+4*(i-6)
def m2():
    e('s_lshl_b32 %s, %s, 4'%(T0,RB)); e('v_mov_b32 v4, %s'%T0); e('v_add_u32 v5, -16, v4'); e('v_max_i32 v5, 0, v5'); e('v_subrev_u32 v6, 32, v4'); e('v_max_i32 v6, 0, v6')
    for i in range(18):
        for r in range(4): e('v_mov_b32 v%d, %s'%(VF(i)+r,ONES))
    poll('1',4,0x01010101,3)
    e('s_lshl_b32 %s, %s, 1'%(T1,CG)); e('s_add_u32 %s, %s, %s'%(T1,T1,KH)); e('s_lshl_b32 %s, %s, 10'%(T1,T1))
    e('s_lshl_b32 %s, %s, 15'%(T0,QBI)); e('s_add_u32 %s, %s, %s'%(T3,T0,T1)); e('buffer_load_dwordx4 %s, v14, %s, %s offen sc1'%(v(QF,4),WS,T3))
    e('s_add_u32 %s, %s, %d'%(T1,T1,KB))
    for d in range(9):
        e('s_sub_i32 %s, %s, %d'%(T3,T0,d<<15)); e('s_max_i32 %s, %s, 0'%(T3,T3)); e('s_add_u32 %s, %s, %s'%(T3,T3,T1))
        e('buffer_load_dwordx4 %s, v14, %s, %s offen sc1'%(v(KF+4*d,4),WS,T3))
    e('s_lshl_b32 %s, %s, 11'%(T1,CG)); e('s_add_u32 %s, %s, %d'%(T1,T1,VB))
    e('s_mov_b32 exec_lo, 0xffff'); e('s_mov_b32 exec_hi, 0xffff')
    for d in range(9):
        e('s_sub_i32 %s, %s, %d'%(T3,T0,d<<15)); e('s_max_i32 %s, %s, 0'%(T3,T3)); e('s_add_u32 %s, %s, %s'%(T3,T3,T1))
        for c in range(2): e('buffer_load_dwordx4 %s, v15, %s, %s offen offset:%d sc1'%(v(VF(2*d+c),4),WS,T3,1024*c))
    e('s_mov_b64 exec, -1')
exchange(False,m2)
e('s_barrier')
e('v_mul_f32 v%d, 0xbfb8aa3b, v%d'%(TMP,RSTD))
e('s_mul_i32 %s, %s, 86'%(T0,QBI)); e('s_lshl_b32 %s, %s, 1'%(T1,T5)); e('s_add_u32 %s, %s, %s'%(T0,T0,T1)); e('s_add_u32 %s, %s, %s'%(T0,T0,KH)); e('s_lshl_b32 %s, %s, 10'%(T0,T0)); e('s_add_u32 %s, %s, %d'%(T0,T0,HB))
for j in range(3):
    for r in range(8): e('v_mul_f32 v%d, v%d, v%d'%(EX+r,ACC+16*j+r,TMP))
    for r in range(8): e('v_exp_f32 v%d, v%d'%(EX+r,EX+r))
    for r in range(8): e('v_add_f32 v%d, 1.0, v%d'%(EX+r,EX+r))
    for r in range(8): e('v_rcp_f32 v%d, v%d'%(EX+r,EX+r))
    for r in range(8): e('v_mul_f32 v%d, v%d, v%d'%(ACC+16*j+r,ACC+16*j+r,RSTD))
    for r in range(8): e('v_mul_f32 v%d, v%d, v%d'%(ACC+16*j+r,ACC+16*j+r,EX+r))
    for r in range(4): e('v_cvt_pk_bf16_f32 v%d, v%d, v%d'%(EX+8+4*j+r,ACC+16*j+2*r,ACC+16*j+2*r+1))
    if j==2: e('s_add_u32 %s, %s, 4096'%(T0,T0))
    e('buffer_store_dwordx4 %s, v15, %s, %s offen offset:%d sc1'%(v(EX+8+4*j,4),WS,T0,2048*(j&1)))
e('v_lshrrev_b32 v3, 2, v1'); e('v_and_b32 v10, 3, v1'); e('v_lshlrev_b32 v10, 4, v10'); e('v_lshl_add_u32 v8, v3, 10, v10')
e('s_mul_i32 %s, %s, 22'%(T5,KQ)); e('s_cmp_eq_u32 %s, 3'%KQ); e('s_subb_u32 %s, %s, 0'%(T5,T5))
e('s_add_u32 %s, %s, %s'%(T2,T5,TG2)); e('s_lshl_b32 %s, %s, 14'%(T2,T2)); e('s_lshl_b32 %s, %s, 7'%(T0,CB)); e('s_add_u32 %s, %s, %s'%(T2,T2,T0))
e('s_lshl_b32 %s, %s, 11'%(T4,KQ)); e('s_lshl_b32 %s, %s, 13'%(T0,TG2)); e('s_add_u32 %s, %s, %s'%(T4,T4,T0))
def w3dma(u):
    if u==22:
        e('s_lshl_b32 %s, %s, 3'%(T2,KQ)); e('s_add_u32 %s, %s, %s'%(T2,T2,TG2)); e('s_lshl_b32 %s, %s, 14'%(T2,T2)); e('s_lshl_b32 %s, %s, 7'%(T0,CB)); e('s_add_u32 %s, %s, %s'%(T2,T2,T0))
    for j in range(2):
        e('s_add_u32 m0, %s, %d'%(T4,(u%18)*8192+960*j)); e('buffer_load_dwordx4 v8, %s, %s offen offset:%d lds'%(W2 if u<22 else WO,T2,64*j))
    e('s_add_u32 %s, %s, 32768'%(T2,T2))
for u in range(0,18,2): w3dma(u)
stamp()
S,NM,MD,MF,O,P=80,176,192,208,224,240
e('v_and_b32 v3, 31, v1'); e('v_lshrrev_b32 v10, 5, v1'); e('v_lshlrev_b32 v10, 2, v10'); e('v_sub_u32 v3, v3, v10'); e('v_mov_b32 v10, 0xf149f2ca')
for r in range(16):
    e('v_cmp_le_i32 vcc, %d, v3'%((r&3)+8*(r>>2))); e('v_cndmask_b32 v%d, v10, 0, vcc'%(MD+r)); e('v_cndmask_b32 v%d, 0, v10, vcc'%(MF+r))
def smf(d,c): e('v_mfma_f32_32x32x16_bf16 %s, %s, %s, %s'%(v(S+16*(d%3),16),v(KF+4*d,4),v(QF,4),c))
e('s_waitcnt vmcnt(39)')
c1=lambda d: v(MD,16) if d==0 else v(MF,16) if d==8 else '0'
smf(0,c1(0)); smf(1,c1(1))
for d in range(9):
    if d+2<9: smf(d+2,c1(d+2))
    b=S+16*(d%3)
    if d==0: e('v_max_f32 v4, v%d, v%d'%(b,b+1)); e('v_max_f32 v5, v%d, v%d'%(b+2,b+3))
    else: e('v_max3_f32 v4, v%d, v%d, v4'%(b,b+1)); e('v_max3_f32 v5, v%d, v%d, v5'%(b+2,b+3))
    for r in range(4,16,2): e('v_max3_f32 v%d, v%d, v%d, v%d'%(4+((r>>1)&1),b+r,b+r+1,4+((r>>1)&1)))
    if d<8: e('s_cmp_eq_u32 %s, %d'%(QBI,d)); e('s_cbranch_scc1 L_a1')
e.label('L_a1')
e('v_max_f32 v4, v4, v5'); e('v_mov_b32 v5, v4'); e('v_permlane32_swap_b32 v4, v5'); e('v_max_f32 v4, v4, v5')
e.nop(8)
for r in range(16): e('v_sub_f32 v%d, v%d, v4'%(MD+r,MD+r))
for r in range(16): e('v_sub_f32 v%d, 0, v4'%(NM+r))
for r in range(16): e('v_sub_f32 v%d, v%d, v4'%(MF+r,MF+r))
def sig(off,val,lbl):
    e('v_mov_b32 v3, %d'%(CNT+off)); e('v_mov_b32 v10, 1'); e('s_mov_b64 exec, 1'); e('ds_add_rtn_u32 v10, v3, v10'); e('s_waitcnt lgkmcnt(0)'); e('s_mov_b64 exec, -1')
    e('v_readfirstlane_b32 %s, v10'%T0); e('s_cmp_lg_u32 %s, 7'%T0); e('s_cbranch_scc1 L_'+lbl); flag(val,lbl); e.label('L_'+lbl)
e('s_waitcnt vmcnt(18)')
sig(0,3,'f2')
c2=lambda d: v(MD,16) if d==0 else v(MF,16) if d==8 else v(NM,16)
smf(0,c2(0))
for d in range(9):
    if d+1<9: smf(d+1,c2(d+1))
    b=S+16*(d%3); p=P+8*(d&1)
    for c in range(2):
        for r in range(8): e('v_exp_f32 v%d, v%d'%(b+8*c+r,b+8*c+r))
        for r in range(4): e('v_cvt_pk_bf16_f32 v%d, v%d, v%d'%(p+4*c+r,b+8*c+2*r,b+8*c+2*r+1))
    for c in range(2): e('v_mfma_f32_32x32x16_bf16 %s, %s, %s, %s'%(v(O,16),v(VF(2*d+c),4),v(p+4*c,4),v(O,16) if d+c else '0'))
    if d<8: e('s_cmp_eq_u32 %s, %d'%(QBI,d)); e('s_cbranch_scc1 L_a2')
e.label('L_a2'); e.nop(12)
e('v_rcp_f32 v4, v%d'%(O+8))
for r in range(8): e('v_mul_f32 v%d, v%d, v4'%(O+r,O+r))
for r in range(4): e('v_cvt_pk_bf16_f32 v%d, v%d, v%d'%(O+8+r,O+2*r,O+2*r+1))
stamp()
e('s_lshr_b32 %s, %s, 1'%(T0,RB2)); e('s_lshl_b32 %s, %s, 4'%(T0,T0)); e('v_mov_b32 v4, %s'%T0)
poll('2',4,0x02020202,1)
e('s_lshl_b32 %s, %s, 5'%(T0,QBI)); e('s_lshl_b32 %s, %s, 1'%(T1,CG)); e('s_add_u32 %s, %s, %s'%(T0,T0,T1)); e('s_add_u32 %s, %s, %s'%(T0,T0,KH)); e('s_lshl_b32 %s, %s, 10'%(T0,T0)); e('s_add_u32 %s, %s, %d'%(T0,T0,OB))
e('buffer_store_dwordx4 %s, v14, %s, %s offen sc1'%(v(O+8,4),WS,T0))
HF,A3,W3,XR=16,136,168,200
e('s_lshl_b32 %s, %s, 1'%(T1,RB2)); e('s_add_u32 %s, %s, %s'%(T1,T1,TG2))
e('s_mul_i32 %s, %s, 86'%(T0,T1)); e('s_add_u32 %s, %s, %s'%(T0,T0,T5)); e('s_lshl_b32 %s, %s, 10'%(T0,T0)); e('s_add_u32 %s, %s, %d'%(T0,T0,HB))
for u in range(22):
    e('buffer_load_dwordx4 %s, v14, %s, %s offen offset:%d sc1'%(v(HF+4*u,4),WS,T0,1024*(u&3)))
    if u&3==3: e('s_add_u32 %s, %s, 4096'%(T0,T0))
e('v_lshrrev_b32 v3, 3, v0'); e('v_and_b32 v10, 7, v0'); e('v_lshlrev_b32 v10, 4, v10'); e('v_lshl_add_u32 v9, v3, 10, v10')
e('s_lshl_b32 %s, %s, 16'%(T3,RB2)); e('s_lshl_b32 %s, %s, 7'%(T0,CB)); e('s_add_u32 %s, %s, %s'%(T3,T3,T0))
e('buffer_load_dwordx4 %s, v9, %s, %s offen'%(v(XR,4),X,T3))
e('v_lshrrev_b32 v10, 5, v1'); e('v_bfe_u32 v3, v1, 2, 2'); e('v_lshl_add_u32 v3, v10, 2, v3'); e('v_lshlrev_b32 v3, 6, v3')
e('v_and_b32 v11, 16, v1'); e('v_lshl_add_u32 v3, v11, 1, v3'); e('v_and_b32 v11, 3, v1'); e('v_lshl_add_u32 v3, v11, 3, v3')
e('s_lshl_b32 %s, %s, 11'%(T0,KQ)); e('v_add_u32 v11, %s, v3'%T0); e('v_add_u32 v12, 49152, v11'); e('v_add_u32 v13, 98304, v11')
e('s_waitcnt vmcnt(23)')
sig(4,7,'f3')
e('s_barrier')
stamp()
def w3read(u):
    a=(u%18)*8192; b=VR0+a//49152; a%=49152
    for j in range(2):
        for jj in range(2): e('ds_read_b64_tr_b16 %s, v%d offset:%d'%(v(W3+(u%3)*8+4*j+2*jj,2),b,a+1024*j+512*jj))
w3read(0); w3read(1)
out=22
extra=0
for u in range(30):
    if u==6:
        e('s_barrier')
        for uu in (18,20,22): w3dma(uu)
        extra+=6
    if u==12:
        e('s_barrier')
        for uu in (24,26,28): w3dma(uu)
        extra+=6
    if u==16: e('s_waitcnt vmcnt(6)'); e('s_barrier')
    if u==20:
        stamp()
        poll('3',4,0x04040404,1)
        e('s_lshl_b32 %s, %s, 5'%(T0,T1)); e('s_lshl_b32 %s, %s, 3'%(T3,KQ)); e('s_add_u32 %s, %s, %s'%(T0,T0,T3)); e('s_lshl_b32 %s, %s, 10'%(T0,T0)); e('s_add_u32 %s, %s, %d'%(T0,T0,OB))
        for i in range(8):
            e('buffer_load_dwordx4 %s, v14, %s, %s offen offset:%d sc1'%(v(HF+88+4*i,4),WS,T0,1024*(i&3)))
            if i==3: e('s_add_u32 %s, %s, 4096'%(T0,T0))
        e('s_barrier')
    if u+2<30: w3read(u+2)
    lg=8 if u+2<30 else 4 if u+1<30 else 0
    if u<16: e('s_waitcnt vmcnt(%d) lgkmcnt(%d)'%(22-u+extra,lg))
    elif u>=22: e('s_waitcnt vmcnt(%d) lgkmcnt(%d)'%(29-u,lg))
    else: e('s_waitcnt lgkmcnt(%d)'%lg)
    if u==21: e('s_cmp_ge_u32 %s, 2'%KQ); e('s_cbranch_scc1 L_s21')
    for j in range(2): e('v_mfma_f32_32x32x16_bf16 %s, %s, %s, %s'%(v(A3+16*j,16),v(W3+(u%3)*8+4*j,4),v(HF+4*u,4),v(A3+16*j,16) if u else '0'))
    if u==21: e.label('L_s21')
stamp()
e('s_barrier')
e('s_mul_i32 %s, %s, 17408'%(T0,KQ)); e('s_mul_i32 %s, %s, 8704'%(T3,TG2)); e('s_add_u32 %s, %s, %s'%(T0,T0,T3))
e('v_and_b32 v3, 31, v1'); e('v_mul_u32_u24 v3, 272, v3'); e('v_lshrrev_b32 v10, 5, v1'); e('v_lshl_add_u32 v3, v10, 4, v3'); e('v_add_u32 v3, %s, v3'%T0)
for j in range(2):
    for q in range(4): e('ds_write_b128 v3, %s offset:%d'%(v(A3+16*j+4*q,4),128*j+32*q))
e('v_lshrrev_b32 v3, 3, v0'); e('v_mul_u32_u24 v3, 272, v3'); e('v_and_b32 v10, 7, v0'); e('v_lshl_add_u32 v3, v10, 5, v3')
for r in range(4): e('v_lshlrev_b32 v%d, 16, v%d'%(64+2*r,XR+r)); e('v_and_b32 v%d, 0xffff0000, v%d'%(65+2*r,XR+r))
e('s_waitcnt lgkmcnt(0)'); e('s_barrier')
for k in range(4):
    for i in range(2): e('ds_read_b128 %s, v3 offset:%d'%(v(16+8*k+4*i,4),17408*k+16*i))
for k in range(4):
    e('s_waitcnt lgkmcnt(%d)'%(6-2*k))
    for r in range(8): e('v_add_f32 v%d, v%d, v%d'%(64+r,64+r,16+8*k+r))
for r in range(4): e('v_cvt_pk_bf16_f32 v%d, v%d, v%d'%(72+r,64+2*r,65+2*r))
e('s_lshl_b32 %s, %s, 16'%(T3,RB2)); e('s_lshl_b32 %s, %s, 7'%(T0,CB)); e('s_add_u32 %s, %s, %s'%(T3,T3,T0))
e('buffer_store_dwordx4 v[72:75], v9, %s, %s offen'%(OUT,T3))
if opt['stamp']:
    stamp(); e('s_memrealtime s[62:63]'); e('s_waitcnt lgkmcnt(0)')
    e('s_lshl_b32 %s, s2, 3'%T0); e('s_add_u32 %s, %s, %s'%(T0,T0,W)); e('s_lshl_b32 %s, %s, 6'%(T0,T0)); e('s_add_u32 %s, %s, %d'%(T0,T0,15<<20))
    e('v_mov_b32 v3, 0'); e('s_mov_b64 exec, 1')
    for i in range(nst[0]+2):
        e('v_mov_b32 v10, s%d'%(60+2*i)); e('buffer_store_dword v10, v3, %s, %s offen offset:%d'%(WS,T0,4*i))
e.label('L_end'); e('s_endpgm')
hdr=open('cdna_kernels/%s.s.ref'%NAME).read().split('; Override')[0]
txt=hdr+'''; @launch grid=(256,1,1) block=(512,1,1) lds=163840
.amdgcn_target "amdgcn-amd-amdhsa--gfx950"
.text
.globl %s_kernel
.p2align 8
.type %s_kernel,@function
%s_kernel:
'''%(NAME,NAME,NAME)+e.text()+'''.section .rodata,"a"
.p2align 6
.amdhsa_kernel %s_kernel
  .amdhsa_next_free_vgpr 256
  .amdhsa_next_free_sgpr 102
  .amdhsa_accum_offset 256
  .amdhsa_group_segment_fixed_size 0
  .amdhsa_kernarg_size 72
  .amdhsa_user_sgpr_count 2
  .amdhsa_user_sgpr_kernarg_segment_ptr 1
  .amdhsa_system_sgpr_workgroup_id_x 1
.end_amdhsa_kernel
'''%NAME
open(sys.argv[1],'w').write(txt)
```

```python
import sys
from emit import E
NAME='parallel_sum__sliding_block__dense_activation_silu__prompt'
opt=dict(stamp=0,map=1,rot=1)
for a in sys.argv[2:]:
    k,v=a.split('='); opt[k]=int(v)
e=E()
QB,KB,VB,OB,HB=0,2<<20,4<<20,6<<20,8<<20
X,WQ,WO,W1,W2,OUT,DBG,WS=['s[%d:%d]'%(8+4*i,11+4*i) for i in range(8)]
RB,CG,W,TG,KH,ONES,QBI,T0,T1,T2,T3,RB2,CB,KQ,TG2,SID,T4,T5,SCNT,ROT,TGS,WQA,WQB,W1A='s40 s41 s42 s43 s44 s45 s46 s47 s48 s49 s50 s51 s52 s53 s54 s55 s56 s57 s58 s59 s3 s98 s99 s100'.split()
EP=14<<20; FL=EP+4096
def v(a,n=1): return 'v%d'%a if n==1 else 'v[%d:%d]'%(a,a+n-1)
nst=[0]
def stamp():
    if opt['stamp']:
        i=nst[0]; nst[0]+=1
        e('s_memtime s[%d:%d]'%(64+2*i,65+2*i)); e('s_waitcnt lgkmcnt(0)')
L,LC,VXA,VWQ,VW1,VT,VR0,VR1,VR2,VL16,VLC16=1,2,4,8,9,10,11,12,13,14,15
XF,ACC,WF,XB=16,80,128,176
SUM,SSQ,CS,NMU,RSTD,TMP=232,233,236,240,241,242
SEL,SA,CA=152,156,160
MISC=147456; STAT=155648; RSC=159744; CNT=160768
e('s_cmp_ge_u32 s2, 256'); e('s_cbranch_scc1 L_end')
if opt['stamp']: e('s_memrealtime s[60:61]'); e('s_memtime s[96:97]'); e('s_waitcnt lgkmcnt(0)'); e('s_mov_b32 s101, s96')
e('s_load_dwordx16 s[64:79], s[0:1], 0'); e('s_load_dwordx2 s[80:81], s[0:1], 64')
e('v_lshrrev_b32 v3, 6, v0'); e('v_and_b32 v1, 63, v0'); e('v_readfirstlane_b32 %s, v3'%W)
e('s_and_b32 %s, s2, 7'%T0); e('s_lshr_b32 %s, s2, 3'%T1)
if opt['map']==0:
    e('s_lshr_b32 %s, %s, 4'%(RB,T1)); e('s_lshl_b32 %s, %s, 1'%(T2,T0)); e('s_add_u32 %s, %s, %s'%(RB,RB,T2)); e('s_and_b32 %s, %s, 15'%(CG,T1))
else:
    e('s_lshr_b32 %s, %s, 3'%(RB,T1)); e('s_lshr_b32 %s, %s, 1'%(T2,T0)); e('s_lshl_b32 %s, %s, 2'%(T2,T2)); e('s_add_u32 %s, %s, %s'%(RB,RB,T2))
    e('s_and_b32 %s, %s, 7'%(CG,T1)); e('s_and_b32 %s, %s, 1'%(T2,T0)); e('s_lshl_b32 %s, %s, 3'%(T2,T2)); e('s_add_u32 %s, %s, %s'%(CG,CG,T2))
e('s_lshr_b32 %s, %s, 3'%(RB2,T1)); e('s_lshl_b32 %s, %s, 2'%(T2,T0)); e('s_add_u32 %s, %s, %s'%(RB2,RB2,T2)); e('s_and_b32 %s, %s, 7'%(CB,T1))
e('s_lshl_b32 %s, %s, 4'%(SID,RB)); e('s_add_u32 %s, %s, %s'%(SID,SID,CG))
e('s_and_b32 %s, %s, 3'%(TG,W)); e('s_lshr_b32 %s, %s, 2'%(KH,W)); e('s_and_b32 %s, %s, 1'%(TG2,W)); e('s_lshr_b32 %s, %s, 1'%(KQ,W))
e('s_lshl_b32 %s, %s, 2'%(QBI,RB)); e('s_add_u32 %s, %s, %s'%(QBI,QBI,TG)); e('s_mov_b32 %s, 0x3f803f80'%ONES)
if opt['rot']: e('s_and_b32 %s, %s, 3'%(ROT,RB)); e('s_and_b32 %s, %s, 7'%(T5,CG))
else: e('s_mov_b32 %s, 0'%ROT); e('s_mov_b32 %s, 0'%T5)
e('s_lshl_b32 %s, %s, 1'%(TGS,KH)); e('s_add_u32 %s, %s, %s'%(TGS,TGS,TG)); e('s_and_b32 %s, %s, 3'%(TGS,TGS))
e('v_lshrrev_b32 v3, 4, v1'); e('v_and_b32 v10, 15, v1'); e('v_xor_b32 v10, v10, v3'); e('v_lshlrev_b32 v10, 4, v10'); e('v_lshlrev_b32 v3, 10, v3')
e('s_lshl_b32 %s, %s, 7'%(T1,ROT))
for i in range(4):
    e('s_add_u32 %s, %s, %d'%(T0,T5,i)); e('s_and_b32 %s, %s, 3'%(T0,T0)); e('s_lshl_b32 %s, %s, 6'%(T0,T0))
    e('v_xor_b32 v11, %s, v10'%T0); e('v_add_u32 v11, %s, v11'%T1); e('v_and_b32 v11, 511, v11'); e('v_add_u32 v%d, v3, v11'%(4+i)); e('v_xor_b32 v%d, 256, v%d'%(140+i,4+i))
e('v_lshrrev_b32 v3, 2, v1'); e('v_and_b32 v10, 3, v1'); e('v_lshlrev_b32 v10, 4, v10')
e('v_mul_u32_u24 v8, 3072, v3'); e('v_add_u32 v8, v8, v10'); e('v_mul_u32_u24 v9, 2752, v3'); e('v_add_u32 v9, v9, v10')
e('s_lshl_b32 %s, %s, 4'%(T0,KH)); e('v_xor_b32 v2, %s, v1'%T0); e('v_lshlrev_b32 v14, 4, v1'); e('v_lshlrev_b32 v15, 4, v2')
e('s_mul_i32 %s, %s, 3072'%(T4,W))
e('s_lshl_b32 %s, %s, 6'%(WQB,CG)); e('s_add_u32 %s, %s, 2048'%(WQB,WQB))
e('s_and_b32 %s, %s, 1'%(WQA,CG)); e('s_lshl_b32 %s, %s, 10'%(WQA,WQA)); e('s_lshr_b32 %s, %s, 1'%(T0,CG)); e('s_lshl_b32 %s, %s, 7'%(T0,T0)); e('s_add_u32 %s, %s, %s'%(WQA,WQA,T0))
e('s_mul_i32 %s, %s, 3'%(W1A,CG)); e('s_min_u32 %s, %s, 40'%(W1A,W1A)); e('s_lshl_b32 %s, %s, 6'%(W1A,W1A))
e('s_waitcnt lgkmcnt(0)')
sz=[2097152,1572864,524288,1409024,1409024,2097152,256,16<<20]
src=[64,66,68,72,74,76,78,80]
def srd(i):
    b=8+4*i
    e('s_mov_b32 s%d, s%d'%(b,src[i])); e('s_mov_b32 s%d, s%d'%(b+1,src[i]+1)); e('s_mov_b32 s%d, %d'%(b+2,sz[i])); e('s_mov_b32 s%d, 0x20000'%(b+3))
srd(0); srd(1)
e('s_add_u32 s4, s80, %d'%EP); e('s_addc_u32 s5, s81, 0'); e('s_load_dwordx2 s[6:7], s[4:5], 0')
WQR=[0,24576,49152,73728]; W1R=[98304,98304+24576,49152,49152+24576]
def wdma(q,c,j):
    if j==0:
        e('s_add_u32 %s, %s, %d'%(T2,ROT,c)); e('s_and_b32 %s, %s, 3'%(T2,T2)); e('s_lshl_b32 %s, %s, 2'%(T3,KH)); e('s_add_u32 %s, %s, %s'%(T2,T2,T3)); e('s_lshl_b32 %s, %s, 2'%(T2,T2)); e('s_add_u32 %s, %s, %s'%(T2,T2,TG))
        if q: e('s_mul_i32 %s, %s, 49152'%(T2,T2)); e('s_add_u32 %s, %s, %s'%(T3,T2,WQB)); e('s_add_u32 %s, %s, %s'%(T2,T2,WQA))
        else: e('s_mul_i32 %s, %s, 44032'%(T2,T2)); e('s_add_u32 %s, %s, %s'%(T2,T2,W1A))
    if q and j==2: e('s_add_u32 m0, %s, %d'%(T4,WQR[c]+2048)); e('buffer_load_dwordx4 v%d, %s, %s offen lds'%(VWQ,WQ,T3))
    elif q: e('s_add_u32 m0, %s, %d'%(T4,WQR[c]+960*j)); e('buffer_load_dwordx4 v%d, %s, %s offen offset:%d lds'%(VWQ,WQ,T2,64*j))
    else: e('s_add_u32 m0, %s, %d'%(T4,W1R[c]+960*j)); e('buffer_load_dwordx4 v%d, %s, %s offen offset:%d lds'%(VW1,W1,T2,64*j))
e('s_lshl_b32 %s, %s, 15'%(T0,QBI)); e('s_lshl_b32 %s, %s, 9'%(T1,KH)); e('s_add_u32 %s, %s, %s'%(T0,T0,T1))
e('s_lshl_b32 %s, %s, 13'%(T1,W)); e('s_add_u32 %s, %s, 98304'%(T1,T1))
for i in range(8):
    e('s_add_u32 %s, %s, %d'%(T2,T5,i)); e('s_and_b32 %s, %s, 7'%(T2,T2)); e('s_lshl_b32 %s, %s, 10'%(T3,T2)); e('s_add_u32 s%d, %s, %s'%(82+i,T3,T1)); e('s_mov_b32 m0, s%d'%(82+i))
    e('s_lshl_b32 %s, %s, 12'%(T2,T2)); e('s_add_u32 s%d, %s, %s'%(90+i,T2,T0))
    e('buffer_load_dwordx4 v%d, %s, s%d offen lds'%(VXA+(i&3),X,90+i))
for j in range(3): wdma(1,0,j)
for i in range(8): e('buffer_load_dwordx4 %s, v%d, %s, s%d offen'%(v(XB+4*i,4),140+(i&3),X,90+i))
for j in range(3): wdma(1,1,j)
for i in range(2,8): srd(i)
XA=208
e('v_and_b32 v3, 31, v2'); e('v_lshrrev_b32 v10, 5, v1'); e('v_and_b32 v11, 15, v3'); e('v_xor_b32 v11, v11, v10'); e('v_lshlrev_b32 v11, 4, v11')
e('v_lshl_add_u32 v11, v3, 8, v11'); e('v_add_u32 v%d, %s, v11'%(XA,T1))
for s in range(1,8): e('v_xor_b32 v%d, %d, v%d'%(XA+s,32*s,XA))
for i in range(8): e('v_add_u32 v%d, s%d, v14'%(XA+8+i,82+i))
e('v_bfe_u32 v3, v1, 2, 2'); e('v_lshl_add_u32 v3, v10, 3, v3'); e('v_lshlrev_b32 v3, 6, v3')
e('v_and_b32 v11, 16, v2'); e('v_lshl_add_u32 v3, v11, 1, v3'); e('v_and_b32 v11, 3, v1'); e('v_lshl_add_u32 v3, v11, 3, v3')
e('s_mul_i32 %s, %s, 12288'%(T0,KH)); e('v_add_u32 v11, %s, v3'%T0); e('v_add_u32 v12, 49152, v11'); e('v_add_u32 v13, 98304, v11')
for r in [SSQ,SSQ+1]+list(range(SA,SA+16)): e('v_mov_b32 v%d, 0'%r)
e('v_bfe_u32 v3, v1, 2, 2'); e('v_lshrrev_b32 v10, 4, v1'); e('v_cmp_eq_u32 vcc, v3, v10'); e('v_mov_b32 v3, %s'%ONES)
for r in range(4): e('v_cndmask_b32 v%d, 0, v3, vcc'%(SEL+r))
e('s_waitcnt lgkmcnt(0)')
e('s_mul_i32 %s, s7, 0x85ebca6b'%T0); e('s_add_u32 %s, %s, s6'%(T0,T0)); e('s_add_u32 s7, %s, 0x1234567'%T0); e('s_mul_i32 s6, s6, 0x9e3779b1'); e('s_add_u32 s6, s6, 0x7f4a7c15')
e('s_waitcnt vmcnt(14)')
for s in range(8): e('ds_read_b128 %s, v%d'%(v(XF+4*s,4),XA+s))
def stat(r): e('v_lshlrev_b32 v%d, 16, v%d'%(TMP,r)); e('v_and_b32 v%d, 0xffff0000, v%d'%(TMP+1,r)); e('v_fmac_f32 v%d, v%d, v%d'%(SSQ,TMP,TMP)); e('v_fmac_f32 v%d, v%d, v%d'%(SSQ+1,TMP+1,TMP+1))
def hsum(acc,r): e('v_mfma_f32_16x16x32_bf16 %s, %s, %s, %s'%(v(acc,4),v(SEL,4),v(r,4),v(acc,4)))
for s in range(8):
    e('s_waitcnt lgkmcnt(%d)'%(7-s))
    hsum(SA,XF+4*s)
    for i in range(4): stat(XF+4*s+i)
e('s_waitcnt vmcnt(11)'); e('s_barrier')
if opt['stamp']: e('s_mov_b32 s64, s101'); nst[0]=1
stamp()
lab=[0]
def wread(reg,s):
    a=reg[s//4]+(s&3)*3072; b=VR0+a//49152; a%=49152
    for j in range(3):
        for jj in range(2): e('ds_read_b64_tr_b16 %s, v%d offset:%d'%(v(WF+(s&1)*12+4*j+2*jj,2),b,a+1024*j+256*jj))
def gemm1(reg,qkv,hooks,dmas):
    wread(reg,0)
    for s in range(16):
        if s in hooks: hooks[s]()
        if s<15: wread(reg,s+1)
        for d in dmas.get(s,[]): wdma(*d)
        lab[0]+=1
        e('s_waitcnt lgkmcnt(%d)'%(6 if s<15 else 0))
        st=[XF+32+r for r in range(32) if qkv and s>=4 and (r*12)//32==s-4]
        for j in range(3):
            a,b=v(WF+(s&1)*12+4*j,4),v(XF+4*s,4)
            if qkv and j==2: a,b=b,a
            e('v_mfma_f32_32x32x16_bf16 %s, %s, %s, %s'%(v(ACC+16*j,16),a,b,v(ACC+16*j,16) if s else '0'))
            if j<len(st): stat(st[j])
        if qkv and s>=8: hsum(SA,XF+4*s)
        e('s_cmp_lg_u32 %s, %d'%(TGS,s&3)); e('s_cbranch_scc1 L_cs%d'%lab[0])
        for j in range(3): hsum(CA+4*j,WF+(s&1)*12+4*j)
        e.pos-=3
        e.label('L_cs%d'%lab[0])
    e.nop(12)
def bar(n): e('s_waitcnt vmcnt(%d)'%n); e('s_barrier')
def h3():
    e('s_waitcnt vmcnt(3)')
    for i in range(8): e('ds_write_b128 v%d, %s'%(XA+8+i,v(XB+4*i,4)))
    e('s_waitcnt lgkmcnt(0)')
    for s in range(8): e('ds_read_b128 %s, v%d'%(v(XF+32+4*s,4),XA+s))
    e('s_waitcnt lgkmcnt(0)'); e('s_barrier')
def h7q():
    bar(4); e('v_mov_b32 v3, %d'%CNT); e('v_mov_b32 v10, 0'); e('ds_write_b32 v3, v10'); e('ds_write_b32 v3, v10 offset:4'); e('s_waitcnt lgkmcnt(0)')
gemm1(WQR,True,{3:h3,7:h7q,11:lambda:bar(5)},{0:[(1,2,0)],1:[(1,2,1)],2:[(1,2,2)],3:[(1,3,0)],4:[(1,3,1)],5:[(1,3,2)],6:[(0,0,0)],7:[(0,0,1)],8:[(0,0,2)],9:[(0,1,0)],10:[(0,1,1)],11:[(0,1,2)]})
e('v_mov_b32 v%d, v%d'%(SUM,SA)); e('v_add_f32 v%d, v%d, v%d'%(SSQ,SSQ,SSQ+1))
stamp()
EX,CP=176,200
def exchange(qkv,mid):
    for j in range(3): e('v_mov_b32 v%d, v%d'%(CS+j,CA+4*j))
    e('s_mul_i32 %s, %s, 6144'%(T0,W)); e('v_add_u32 v3, %s, v15'%T0)
    for j in range(3):
        for i in range(2): e('ds_write_b128 v3, %s offset:%d'%(v(ACC+16*j+8+4*i,4),2048*j+1024*i))
    e('s_lshl_b32 %s, %s, 10'%(T0,W)); e('s_add_u32 %s, %s, %d'%(T0,T0,MISC)); e('v_add_u32 v10, %s, v15'%T0); e('ds_write_b128 v10, %s'%v(CS,4))
    if qkv:
        e('s_lshl_b32 %s, %s, 9'%(T0,W)); e('s_add_u32 %s, %s, %d'%(T0,T0,STAT)); e('v_lshlrev_b32 v10, 3, v2'); e('v_add_u32 v10, %s, v10'%T0); e('ds_write_b64 v10, %s'%v(SUM,2))
        e('v_xor_b32 v10, 2048, v10')
    e('s_xor_b32 %s, %s, 4'%(T0,W)); e('s_mul_i32 %s, %s, 6144'%(T0,T0)); e('v_add_u32 v3, %s, v15'%T0)
    e('s_waitcnt lgkmcnt(0)'); e('s_barrier')
    if qkv: e('ds_read_b64 %s, v10'%v(TMP,2))
    e('v_add_u32 v10, %d, v15'%MISC)
    for w in range(8): e('ds_read_b128 %s, v10 offset:%d'%(v(CP+4*w,4),1024*w))
    for i in range(6): e('ds_read_b128 %s, v3 offset:%d'%(v(EX+4*i,4),1024*i))
    mid()
    if qkv:
        e('s_waitcnt lgkmcnt(14)')
        e('v_add_f32 v%d, v%d, v%d'%(SUM,SUM,TMP)); e('v_add_f32 v%d, v%d, v%d'%(SSQ,SSQ,TMP+1))
        e('v_mov_b32 v%d, v%d'%(TMP,SUM)); e('v_mov_b32 v%d, v%d'%(TMP+1,SSQ))
        e('v_permlane32_swap_b32 v%d, v%d'%(SUM,TMP)); e('v_permlane32_swap_b32 v%d, v%d'%(SSQ,TMP+1))
        e('v_add_f32 v%d, v%d, v%d'%(SUM,SUM,TMP)); e('v_add_f32 v%d, v%d, v%d'%(SSQ,SSQ,TMP+1))
        e('v_mul_f32 v%d, 0xbb000000, v%d'%(NMU,SUM)); e('v_mul_f32 v%d, 0x3b000000, v%d'%(SSQ,SSQ))
        e('v_fma_f32 v%d, -v%d, v%d, v%d'%(SSQ,NMU,NMU,SSQ)); e('v_max_f32 v%d, 0, v%d'%(SSQ,SSQ)); e('v_add_f32 v%d, 0x3727c5ac, v%d'%(SSQ,SSQ))
        e('v_rsq_f32 v%d, v%d'%(RSTD,SSQ))
        e('s_lshl_b32 %s, %s, 7'%(T0,W)); e('s_add_u32 %s, %s, %d'%(T0,T0,RSC)); e('v_and_b32 v10, 31, v2'); e('v_lshlrev_b32 v10, 2, v10'); e('v_add_u32 v10, %s, v10'%T0)
        e('ds_write_b32 v10, v%d'%RSTD)
        e('s_lshl_b32 %s, %s, 6'%(T1,KH)); e('s_add_u32 %s, %s, %s'%(T0,T0,T1)); e('v_lshrrev_b32 v10, 5, v1'); e('v_lshlrev_b32 v10, 4, v10'); e('v_add_u32 v10, %s, v10'%T0)
        e('ds_read_b128 %s, v10'%v(244,4)); e('ds_read_b128 %s, v10 offset:32'%v(248,4))
    e('s_waitcnt lgkmcnt(0)')
    for j in range(3):
        for st in (4,2,1):
            for w in range(st): e('v_add_f32 v%d, v%d, v%d'%(CP+4*w+j,CP+4*w+j,CP+4*(w+st)+j))
        for r in range(8): e('v_add_f32 v%d, v%d, v%d'%(ACC+16*j+r,ACC+16*j+r,EX+8*j+r))
        a,b='v%d'%(CP+j),'v%d'%NMU
        if qkv and j==2: a,b=b,a
        e('v_mfma_f32_32x32x2_f32 %s, %s, %s, %s'%(v(ACC+16*j,16),a,b,v(ACC+16*j,16)))
    if qkv:
        for r in range(12): e('v_mov_b32 v%d, 0'%(CA+r))
def m1():
    for j in range(3): wdma(0,2,j)
exchange(True,m1)
e('s_and_b32 %s, %s, 1'%(T0,CG)); e('s_cmp_eq_u32 %s, 0'%T0); e('s_cselect_b32 %s, 0x3eb8aa3b, 1.0'%T1); e('v_mul_f32 v%d, %s, v%d'%(TMP,T1,RSTD))
e('s_lshl_b32 %s, %s, 21'%(T0,T0)); e('s_lshl_b32 %s, %s, 15'%(T1,QBI)); e('s_add_u32 %s, %s, %s'%(T0,T0,T1))
e('s_lshr_b32 %s, %s, 1'%(T3,CG)); e('s_lshl_b32 %s, %s, 2'%(T3,T3)); e('s_add_u32 %s, %s, %s'%(T3,T3,KH)); e('s_lshl_b32 %s, %s, 10'%(T3,T3)); e('s_add_u32 %s, %s, %s'%(T0,T0,T3))
e('s_lshl_b32 %s, %s, 1'%(T3,CG)); e('s_add_u32 %s, %s, %s'%(T3,T3,KH)); e('s_lshl_b32 %s, %s, 10'%(T3,T3)); e('s_add_u32 %s, %s, %s'%(T1,T1,T3)); e('s_add_u32 %s, %s, %d'%(T1,T1,VB))
for j in range(3):
    for r in range(8): e('v_mul_f32 v%d, v%d, v%d'%(ACC+16*j+r,ACC+16*j+r,TMP if j<2 else 244+r))
    for r in range(4): e('v_cvt_pk_bf16_f32 v%d, v%d, v%d'%(EX+4*j+r,ACC+16*j+2*r,ACC+16*j+2*r+1))
    if j<2: e('buffer_store_dwordx4 %s, v15, %s, %s offen offset:%d sc1'%(v(EX+4*j,4),WS,T0,2048*j))
    else: e('buffer_store_dwordx4 %s, v15, %s, %s offen sc1'%(v(EX+4*j,4),WS,T1))
stamp()
def flag(stage):
    e('s_mov_b64 exec, 1'); e('s_lshl_b32 %s, %s, 3'%(T0,SID)); e('s_add_u32 %s, %s, %d'%(T0,T0,FL+2048*stage)); e('v_mov_b32 v4, s6'); e('v_mov_b32 v5, s7'); e('v_mov_b32 v3, 0')
    e('buffer_store_dwordx2 v[4:5], v3, %s, %s offen sc1'%(WS,T0)); e('s_mov_b64 exec, -1')
def h7():
    bar(3); e('s_cmp_lg_u32 %s, 0'%W); e('s_cbranch_scc1 L_f1'); flag(0); e.label('L_f1')
bar(9)
gemm1(W1R,False,{3:lambda:bar(9),7:h7,11:lambda:bar(0)},{0:[(0,3,0)],1:[(0,3,1)],2:[(0,3,2)]})
stamp()
def poll(name,voff,base,n=1):
    e('s_mov_b32 %s, 0'%SCNT); e('s_mov_b32 %s, %d'%(T3,base)); e.label('L_p'+name)
    for i in range(n): e('buffer_load_dwordx2 %s, v%d, %s, %s offen offset:%d sc1'%(v(244+2*i,2),voff,WS,T3,512*i))
    e('s_waitcnt vmcnt(0)')
    for i in range(n):
        e('v_cmp_ne_u64 vcc, s[6:7], %s'%v(244+2*i,2)); e.nop(4); e('s_cbranch_vccnz L_r'+name)
    e('s_branch L_q'+name); e.label('L_r'+name)
    e('s_sleep 4'); e('s_add_u32 %s, %s, 1'%(SCNT,SCNT)); e('s_cmp_lt_u32 %s, 0x40000'%SCNT); e('s_cbranch_scc1 L_p'+name); e.label('L_q'+name)
KF,QF=16,52
def VF(i): return 56+4*i if i<6 else 128+4*(i-6)
def m2():
    e('s_lshl_b32 %s, %s, 4'%(T0,RB)); e('s_sub_u32 %s, %s, 32'%(T0,T0)); e('v_min_u32 v6, 47, v1'); e('v_add_u32 v6, %s, v6'%T0); e('v_max_i32 v6, 0, v6'); e('v_lshlrev_b32 v6, 3, v6')
    for i in range(18):
        for r in range(4): e('v_mov_b32 v%d, %s'%(VF(i)+r,ONES))
    stamp(); poll('1',6,FL); stamp()
    e('s_lshl_b32 %s, %s, 1'%(T1,CG)); e('s_add_u32 %s, %s, %s'%(T1,T1,KH)); e('s_lshl_b32 %s, %s, 10'%(T1,T1))
    e('s_lshl_b32 %s, %s, 15'%(T0,QBI)); e('s_add_u32 %s, %s, %s'%(T3,T0,T1)); e('buffer_load_dwordx4 %s, v14, %s, %s offen sc1'%(v(QF,4),WS,T3))
    e('s_add_u32 %s, %s, %d'%(T1,T1,KB))
    for d in range(9):
        e('s_sub_i32 %s, %s, %d'%(T3,T0,d<<15)); e('s_max_i32 %s, %s, 0'%(T3,T3)); e('s_add_u32 %s, %s, %s'%(T3,T3,T1))
        e('buffer_load_dwordx4 %s, v14, %s, %s offen sc1'%(v(KF+4*d,4),WS,T3))
    e('s_lshl_b32 %s, %s, 11'%(T1,CG)); e('s_add_u32 %s, %s, %d'%(T1,T1,VB))
    e('s_mov_b32 exec_lo, 0xffff'); e('s_mov_b32 exec_hi, 0xffff')
    for d in range(9):
        e('s_sub_i32 %s, %s, %d'%(T3,T0,d<<15)); e('s_max_i32 %s, %s, 0'%(T3,T3)); e('s_add_u32 %s, %s, %s'%(T3,T3,T1))
        for c in range(2): e('buffer_load_dwordx4 %s, v15, %s, %s offen offset:%d sc1'%(v(VF(2*d+c),4),WS,T3,1024*c))
    e('s_mov_b64 exec, -1'); stamp()
exchange(False,m2)
e('s_barrier')
e('v_mul_f32 v%d, 0xbfb8aa3b, v%d'%(TMP,RSTD))
e('s_mul_i32 %s, %s, 86'%(T0,QBI)); e('s_lshr_b32 %s, %s, 5'%(T1,W1A)); e('s_add_u32 %s, %s, %s'%(T0,T0,T1)); e('s_add_u32 %s, %s, %s'%(T0,T0,KH)); e('s_lshl_b32 %s, %s, 10'%(T0,T0)); e('s_add_u32 %s, %s, %d'%(T0,T0,HB))
for j in range(3):
    for r in range(8): e('v_mul_f32 v%d, v%d, v%d'%(EX+r,ACC+16*j+r,TMP))
    for r in range(8): e('v_exp_f32 v%d, v%d'%(EX+r,EX+r))
    for r in range(8): e('v_add_f32 v%d, 1.0, v%d'%(EX+r,EX+r))
    for r in range(8): e('v_rcp_f32 v%d, v%d'%(EX+r,EX+r))
    for r in range(8): e('v_mul_f32 v%d, v%d, v%d'%(ACC+16*j+r,ACC+16*j+r,RSTD))
    for r in range(8): e('v_mul_f32 v%d, v%d, v%d'%(ACC+16*j+r,ACC+16*j+r,EX+r))
    for r in range(4): e('v_cvt_pk_bf16_f32 v%d, v%d, v%d'%(EX+8+4*j+r,ACC+16*j+2*r,ACC+16*j+2*r+1))
    if j==2: e('s_add_u32 %s, %s, 4096'%(T0,T0))
    e('buffer_store_dwordx4 %s, v15, %s, %s offen offset:%d sc1'%(v(EX+8+4*j,4),WS,T0,2048*(j&1)))
stamp()
e('v_lshrrev_b32 v3, 2, v1'); e('v_and_b32 v10, 3, v1'); e('v_lshlrev_b32 v10, 4, v10'); e('v_lshl_add_u32 v8, v3, 10, v10')
e('s_mul_i32 %s, %s, 22'%(T5,KQ)); e('s_cmp_eq_u32 %s, 3'%KQ); e('s_subb_u32 %s, %s, 0'%(T5,T5))
e('s_add_u32 %s, %s, %s'%(T2,T5,TG2)); e('s_lshl_b32 %s, %s, 14'%(T2,T2)); e('s_lshl_b32 %s, %s, 7'%(T0,CB)); e('s_add_u32 %s, %s, %s'%(T2,T2,T0))
e('s_lshl_b32 %s, %s, 11'%(T4,KQ)); e('s_lshl_b32 %s, %s, 13'%(T0,TG2)); e('s_add_u32 %s, %s, %s'%(T4,T4,T0))
def w3dma(u):
    if u==22:
        e('s_lshl_b32 %s, %s, 3'%(T2,KQ)); e('s_add_u32 %s, %s, %s'%(T2,T2,TG2)); e('s_lshl_b32 %s, %s, 14'%(T2,T2)); e('s_lshl_b32 %s, %s, 7'%(T0,CB)); e('s_add_u32 %s, %s, %s'%(T2,T2,T0))
    for j in range(2):
        e('s_add_u32 m0, %s, %d'%(T4,(u%18)*8192+960*j)); e('buffer_load_dwordx4 v8, %s, %s offen offset:%d lds'%(W2 if u<22 else WO,T2,64*j))
    e('s_add_u32 %s, %s, 32768'%(T2,T2))
for u in range(0,18,2): w3dma(u)
stamp()
S,NM,MD,MF,O,P=80,176,192,208,224,240
e('v_and_b32 v3, 31, v1'); e('v_lshrrev_b32 v10, 5, v1'); e('v_lshlrev_b32 v10, 2, v10'); e('v_sub_u32 v3, v3, v10'); e('v_mov_b32 v10, 0xf149f2ca')
for r in range(16):
    e('v_cmp_le_i32 vcc, %d, v3'%((r&3)+8*(r>>2))); e('v_cndmask_b32 v%d, v10, 0, vcc'%(MD+r)); e('v_cndmask_b32 v%d, 0, v10, vcc'%(MF+r))
def smf(d,c): e('v_mfma_f32_32x32x16_bf16 %s, %s, %s, %s'%(v(S+16*(d%3),16),v(KF+4*d,4),v(QF,4),c))
e('s_waitcnt vmcnt(39)')
c1=lambda d: v(MD,16) if d==0 else v(MF,16) if d==8 else '0'
smf(0,c1(0)); smf(1,c1(1))
for d in range(9):
    if d+2<9: smf(d+2,c1(d+2))
    b=S+16*(d%3)
    if d==0: e('v_max_f32 v4, v%d, v%d'%(b,b+1)); e('v_max_f32 v5, v%d, v%d'%(b+2,b+3))
    else: e('v_max3_f32 v4, v%d, v%d, v4'%(b,b+1)); e('v_max3_f32 v5, v%d, v%d, v5'%(b+2,b+3))
    for r in range(4,16,2): e('v_max3_f32 v%d, v%d, v%d, v%d'%(4+((r>>1)&1),b+r,b+r+1,4+((r>>1)&1)))
    if d<8: e('s_cmp_eq_u32 %s, %d'%(QBI,d)); e('s_cbranch_scc1 L_a1')
e.label('L_a1')
e('v_max_f32 v4, v4, v5'); e('v_mov_b32 v5, v4'); e('v_permlane32_swap_b32 v4, v5'); e('v_max_f32 v4, v4, v5')
e.nop(8)
for r in range(16): e('v_sub_f32 v%d, v%d, v4'%(MD+r,MD+r))
for r in range(16): e('v_sub_f32 v%d, 0, v4'%(NM+r))
for r in range(16): e('v_sub_f32 v%d, v%d, v4'%(MF+r,MF+r))
def sig(off,val,lbl):
    e('v_mov_b32 v3, %d'%(CNT+off)); e('v_mov_b32 v10, 1'); e('s_mov_b64 exec, 1'); e('ds_add_rtn_u32 v10, v3, v10'); e('s_waitcnt lgkmcnt(0)'); e('s_mov_b64 exec, -1')
    e('v_readfirstlane_b32 %s, v10'%T0); e('s_cmp_lg_u32 %s, 7'%T0); e('s_cbranch_scc1 L_'+lbl); flag(val); e.label('L_'+lbl)
e('s_waitcnt vmcnt(18)')
sig(0,1,'f2')
c2=lambda d: v(MD,16) if d==0 else v(MF,16) if d==8 else v(NM,16)
smf(0,c2(0))
for d in range(9):
    if d+1<9: smf(d+1,c2(d+1))
    b=S+16*(d%3); p=P+8*(d&1)
    for c in range(2):
        for r in range(8): e('v_exp_f32 v%d, v%d'%(b+8*c+r,b+8*c+r))
        for r in range(4): e('v_cvt_pk_bf16_f32 v%d, v%d, v%d'%(p+4*c+r,b+8*c+2*r,b+8*c+2*r+1))
    for c in range(2): e('v_mfma_f32_32x32x16_bf16 %s, %s, %s, %s'%(v(O,16),v(VF(2*d+c),4),v(p+4*c,4),v(O,16) if d+c else '0'))
    if d<8: e('s_cmp_eq_u32 %s, %d'%(QBI,d)); e('s_cbranch_scc1 L_a2')
e.label('L_a2'); e.nop(12)
e('v_rcp_f32 v4, v%d'%(O+8))
for r in range(8): e('v_mul_f32 v%d, v%d, v4'%(O+r,O+r))
for r in range(4): e('v_cvt_pk_bf16_f32 v%d, v%d, v%d'%(O+8+r,O+2*r,O+2*r+1))
stamp()
e('s_or_b32 %s, %s, %s'%(T0,SID,W)); e('s_cmp_lg_u32 %s, 0'%T0); e('s_cbranch_scc1 L_noep')
e('v_lshlrev_b32 v6, 3, v1'); poll('e',6,FL,4)
e('v_mov_b32 v4, s6'); e('v_mov_b32 v5, s7'); e('v_mov_b32 v3, 0'); e('s_mov_b32 %s, %d'%(T0,EP)); e('s_mov_b64 exec, 1'); e('buffer_store_dwordx2 v[4:5], v3, %s, %s offen sc1'%(WS,T0)); e('s_mov_b64 exec, -1')
e.label('L_noep')
e('s_lshr_b32 %s, %s, 1'%(T0,RB2)); e('s_lshl_b32 %s, %s, 7'%(T0,T0)); e('v_and_b32 v6, 15, v1'); e('v_lshlrev_b32 v6, 3, v6'); e('v_add_u32 v6, %s, v6'%T0)
poll('2',6,FL+2048); stamp()
e('s_lshl_b32 %s, %s, 5'%(T0,QBI)); e('s_lshl_b32 %s, %s, 1'%(T1,CG)); e('s_add_u32 %s, %s, %s'%(T0,T0,T1)); e('s_add_u32 %s, %s, %s'%(T0,T0,KH)); e('s_lshl_b32 %s, %s, 10'%(T0,T0)); e('s_add_u32 %s, %s, %d'%(T0,T0,OB))
e('buffer_store_dwordx4 %s, v14, %s, %s offen sc1'%(v(O+8,4),WS,T0))
HF,A3,W3,XR=16,136,168,200
e('s_lshl_b32 %s, %s, 1'%(T1,RB2)); e('s_add_u32 %s, %s, %s'%(T1,T1,TG2))
e('s_mul_i32 %s, %s, 86'%(T0,T1)); e('s_add_u32 %s, %s, %s'%(T0,T0,T5)); e('s_lshl_b32 %s, %s, 10'%(T0,T0)); e('s_add_u32 %s, %s, %d'%(T0,T0,HB))
for u in range(22):
    e('buffer_load_dwordx4 %s, v14, %s, %s offen offset:%d sc1'%(v(HF+4*u,4),WS,T0,1024*(u&3)))
    if u&3==3: e('s_add_u32 %s, %s, 4096'%(T0,T0))
e('v_lshrrev_b32 v3, 3, v0'); e('v_and_b32 v10, 7, v0'); e('v_lshlrev_b32 v10, 4, v10'); e('v_lshl_add_u32 v9, v3, 10, v10')
e('s_lshl_b32 %s, %s, 16'%(T3,RB2)); e('s_lshl_b32 %s, %s, 7'%(T0,CB)); e('s_add_u32 %s, %s, %s'%(T3,T3,T0))
e('buffer_load_dwordx4 %s, v9, %s, %s offen'%(v(XR,4),X,T3))
e('v_lshrrev_b32 v10, 5, v1'); e('v_bfe_u32 v3, v1, 2, 2'); e('v_lshl_add_u32 v3, v10, 2, v3'); e('v_lshlrev_b32 v3, 6, v3')
e('v_and_b32 v11, 16, v1'); e('v_lshl_add_u32 v3, v11, 1, v3'); e('v_and_b32 v11, 3, v1'); e('v_lshl_add_u32 v3, v11, 3, v3')
e('s_lshl_b32 %s, %s, 11'%(T0,KQ)); e('v_add_u32 v11, %s, v3'%T0); e('v_add_u32 v12, 49152, v11'); e('v_add_u32 v13, 98304, v11')
stamp(); e('s_waitcnt vmcnt(23)')
sig(4,2,'f3')
e('s_barrier')
stamp()
def w3read(u):
    a=(u%18)*8192; b=VR0+a//49152; a%=49152
    for j in range(2):
        for jj in range(2): e('ds_read_b64_tr_b16 %s, v%d offset:%d'%(v(W3+(u%3)*8+4*j+2*jj,2),b,a+1024*j+512*jj))
w3read(0); w3read(1)
out=22
extra=0
for u in range(30):
    if u==6:
        e('s_barrier')
        for uu in (18,20,22): w3dma(uu)
        extra+=6
    if u==12:
        e('s_barrier')
        for uu in (24,26,28): w3dma(uu)
        extra+=6
    if u==16: e('s_waitcnt vmcnt(6)'); e('s_barrier')
    if u==20:
        stamp()
        poll('3',6,FL+4096)
        e('s_lshl_b32 %s, %s, 5'%(T0,T1)); e('s_lshl_b32 %s, %s, 3'%(T3,KQ)); e('s_add_u32 %s, %s, %s'%(T0,T0,T3)); e('s_lshl_b32 %s, %s, 10'%(T0,T0)); e('s_add_u32 %s, %s, %d'%(T0,T0,OB))
        for i in range(8):
            e('buffer_load_dwordx4 %s, v14, %s, %s offen offset:%d sc1'%(v(HF+88+4*i,4),WS,T0,1024*(i&3)))
            if i==3: e('s_add_u32 %s, %s, 4096'%(T0,T0))
        e('s_barrier')
    if u+2<30: w3read(u+2)
    lg=8 if u+2<30 else 4 if u+1<30 else 0
    if u<16: e('s_waitcnt vmcnt(%d) lgkmcnt(%d)'%(22-u+extra,lg))
    elif u>=22: e('s_waitcnt vmcnt(%d) lgkmcnt(%d)'%(29-u,lg))
    else: e('s_waitcnt lgkmcnt(%d)'%lg)
    if u==21: e('s_cmp_ge_u32 %s, 2'%KQ); e('s_cbranch_scc1 L_s21')
    for j in range(2): e('v_mfma_f32_32x32x16_bf16 %s, %s, %s, %s'%(v(A3+16*j,16),v(W3+(u%3)*8+4*j,4),v(HF+4*u,4),v(A3+16*j,16) if u else '0'))
    if u==21: e.label('L_s21')
stamp()
e('s_barrier')
e('s_mul_i32 %s, %s, 17408'%(T0,KQ)); e('s_mul_i32 %s, %s, 8704'%(T3,TG2)); e('s_add_u32 %s, %s, %s'%(T0,T0,T3))
e('v_and_b32 v3, 31, v1'); e('v_mul_u32_u24 v3, 272, v3'); e('v_lshrrev_b32 v10, 5, v1'); e('v_lshl_add_u32 v3, v10, 4, v3'); e('v_add_u32 v3, %s, v3'%T0)
for j in range(2):
    for q in range(4): e('ds_write_b128 v3, %s offset:%d'%(v(A3+16*j+4*q,4),128*j+32*q))
e('v_lshrrev_b32 v3, 3, v0'); e('v_mul_u32_u24 v3, 272, v3'); e('v_and_b32 v10, 7, v0'); e('v_lshl_add_u32 v3, v10, 5, v3')
for r in range(4): e('v_lshlrev_b32 v%d, 16, v%d'%(64+2*r,XR+r)); e('v_and_b32 v%d, 0xffff0000, v%d'%(65+2*r,XR+r))
e('s_waitcnt lgkmcnt(0)'); e('s_barrier')
for k in range(4):
    for i in range(2): e('ds_read_b128 %s, v3 offset:%d'%(v(16+8*k+4*i,4),17408*k+16*i))
for k in range(4):
    e('s_waitcnt lgkmcnt(%d)'%(6-2*k))
    for r in range(8): e('v_add_f32 v%d, v%d, v%d'%(64+r,64+r,16+8*k+r))
for r in range(4): e('v_cvt_pk_bf16_f32 v%d, v%d, v%d'%(72+r,64+2*r,65+2*r))
e('s_lshl_b32 %s, %s, 16'%(T3,RB2)); e('s_lshl_b32 %s, %s, 7'%(T0,CB)); e('s_add_u32 %s, %s, %s'%(T3,T3,T0))
e('buffer_store_dwordx4 v[72:75], v9, %s, %s offen'%(OUT,T3))
if opt['stamp']:
    stamp(); e('s_memrealtime s[62:63]'); e('s_waitcnt lgkmcnt(0)')
    e('s_lshl_b32 %s, s2, 3'%T0); e('s_add_u32 %s, %s, %s'%(T0,T0,W)); e('s_lshl_b32 %s, %s, 7'%(T0,T0)); e('s_add_u32 %s, %s, %d'%(T0,T0,15<<20))
    e('v_mov_b32 v3, 0'); e('s_mov_b64 exec, 1')
    for i in range(nst[0]+2):
        e('v_mov_b32 v10, s%d'%(60+2*i)); e('buffer_store_dword v10, v3, %s, %s offen offset:%d'%(WS,T0,4*i))
e.label('L_end'); e('s_endpgm')
hdr=open('cdna_kernels/%s.s.ref'%NAME).read().split('; Override')[0]
txt=hdr+'''; @launch grid=(256,1,1) block=(512,1,1) lds=163840
.amdgcn_target "amdgcn-amd-amdhsa--gfx950"
.text
.globl %s_kernel
.p2align 8
.type %s_kernel,@function
%s_kernel:
'''%(NAME,NAME,NAME)+e.text()+'''.section .rodata,"a"
.p2align 6
.amdhsa_kernel %s_kernel
  .amdhsa_next_free_vgpr 256
  .amdhsa_next_free_sgpr 102
  .amdhsa_accum_offset 256
  .amdhsa_group_segment_fixed_size 0
  .amdhsa_kernarg_size 72
  .amdhsa_user_sgpr_count 2
  .amdhsa_user_sgpr_kernarg_segment_ptr 1
  .amdhsa_system_sgpr_workgroup_id_x 1
.end_amdhsa_kernel
'''%NAME
open(sys.argv[1],'w').write(txt)
```

```python
import sys
from emit import E
NAME='parallel_sum__sliding_block__dense_activation_silu__prompt'
opt=dict(stamp=0,map=1,rot=1,pf=4,wsp=1,wpre=6,w0=0,la=4,pu=19,pfp=3,pe=23)
for a in sys.argv[2:]:
    k,v=a.split('='); opt[k]=int(v)
e=E()
QB,KB,VB,OB,HB=0,2<<20,4<<20,6<<20,8<<20
X,WQ,WO,W1,W2,OUT,DBG,WS=['s[%d:%d]'%(8+4*i,11+4*i) for i in range(8)]
RB,CG,W,TG,KH,ONES,QBI,T0,T1,T2,T3,RB2,CB,KQ,TG2,SID,T4,T5,SCNT,ROT,TGS,WQA,WQB,W1A='s40 s41 s42 s43 s44 s45 s46 s47 s48 s49 s50 s51 s52 s53 s54 s55 s56 s57 s58 s59 s3 s98 s99 s100'.split()
EP=14<<20; FL=EP+4096
def v(a,n=1): return 'v%d'%a if n==1 else 'v[%d:%d]'%(a,a+n-1)
nst=[0]
def stamp(l=1):
    if opt['stamp']&l and nst[0]<16:
        i=nst[0]; nst[0]+=1
        e('s_memtime s[%d:%d]'%(64+2*i,65+2*i)); e('s_waitcnt lgkmcnt(0)')
VWQ,VW1,VR0=8,9,11
XF,ACC,WF,RAW=16,144,168,192
CNT=160768; XR=98304
e('s_cmp_ge_u32 s2, 256'); e('s_cbranch_scc1 L_end')
if opt['stamp']: e('s_memrealtime s[60:61]'); e('s_memtime s[96:97]'); e('s_waitcnt lgkmcnt(0)'); e('s_mov_b32 s101, s96')
e('s_load_dwordx16 s[64:79], s[0:1], 0'); e('s_load_dwordx2 s[80:81], s[0:1], 64')
e('v_lshrrev_b32 v3, 6, v0'); e('v_and_b32 v1, 63, v0'); e('v_readfirstlane_b32 %s, v3'%W)
e('s_and_b32 %s, s2, 7'%T0); e('s_lshr_b32 %s, s2, 3'%T1)
if opt['map']==0:
    e('s_lshr_b32 %s, %s, 4'%(RB,T1)); e('s_lshl_b32 %s, %s, 1'%(T2,T0)); e('s_add_u32 %s, %s, %s'%(RB,RB,T2)); e('s_and_b32 %s, %s, 15'%(CG,T1))
else:
    e('s_lshr_b32 %s, %s, 3'%(RB,T1)); e('s_lshr_b32 %s, %s, 1'%(T2,T0)); e('s_lshl_b32 %s, %s, 2'%(T2,T2)); e('s_add_u32 %s, %s, %s'%(RB,RB,T2))
    e('s_and_b32 %s, %s, 7'%(CG,T1)); e('s_and_b32 %s, %s, 1'%(T2,T0)); e('s_lshl_b32 %s, %s, 3'%(T2,T2)); e('s_add_u32 %s, %s, %s'%(CG,CG,T2))
e('s_lshr_b32 %s, %s, 3'%(RB2,T1)); e('s_lshl_b32 %s, %s, 2'%(T2,T0)); e('s_add_u32 %s, %s, %s'%(RB2,RB2,T2)); e('s_and_b32 %s, %s, 7'%(CB,T1))
e('s_lshl_b32 %s, %s, 4'%(SID,RB)); e('s_add_u32 %s, %s, %s'%(SID,SID,CG))
e('s_and_b32 %s, %s, 3'%(TG,W)); e('s_lshr_b32 %s, %s, 2'%(KH,W)); e('s_and_b32 %s, %s, 1'%(TG2,W)); e('s_lshr_b32 %s, %s, 1'%(KQ,W))
e('s_lshl_b32 %s, %s, 2'%(QBI,RB)); e('s_add_u32 %s, %s, %s'%(QBI,QBI,TG)); e('s_mov_b32 %s, 0x3f803f80'%ONES)
if opt['rot']: e('s_lshl_b32 %s, %s, 1'%(ROT,RB)); e('s_add_u32 %s, %s, %s'%(ROT,ROT,CG)); e('s_and_b32 %s, %s, 7'%(ROT,ROT))
else: e('s_mov_b32 %s, 0'%ROT)
e('v_lshrrev_b32 v3, 3, v1'); e('v_and_b32 v10, 7, v1'); e('v_lshlrev_b32 v4, 4, v10'); e('v_lshl_add_u32 v4, v3, 10, v4'); e('v_add_u32 v5, 8192, v4')
e('s_lshl_b32 %s, %s, 17'%(T0,RB)); e('s_lshl_b32 %s, %s, 14'%(T1,W)); e('s_add_u32 %s, %s, %s'%(T0,T0,T1))
e('s_waitcnt lgkmcnt(0)')
sz=[2097152,1572864,524288,1409024,1409024,2097152,256,16<<20]
src=[64,66,68,72,74,76,78,80]
def srd(i):
    b=8+4*i
    e('s_mov_b32 s%d, s%d'%(b,src[i])); e('s_mov_b32 s%d, s%d'%(b+1,src[i]+1)); e('s_mov_b32 s%d, %d'%(b+2,sz[i])); e('s_mov_b32 s%d, 0x20000'%(b+3))
srd(0)
PF=opt['pf']
e('s_mov_b32 %s, %s'%(T5,T0)); e('s_mov_b32 %s, %s'%(SCNT,ROT))
def xld(i):
    sg,rg=i>>1,i&1
    if rg==0: e('s_add_u32 %s, %s, %d'%(TGS,SCNT,sg)); e('s_and_b32 %s, %s, 7'%(TGS,TGS)); e('s_lshl_b32 %s, %s, 7'%(TGS,TGS)); e('s_add_u32 %s, %s, %s'%(TGS,TGS,T5))
    e('buffer_load_dwordx4 %s, v%d, %s, %s offen'%(v(RAW+4*i,4),4+rg,X,TGS))
for i in range(PF): xld(i)
e('s_add_u32 s4, s80, %d'%EP); e('s_addc_u32 s5, s81, 0'); e('s_load_dwordx2 s[6:7], s[4:5], 0')
for i in range(1,8): srd(i)
if opt['stamp']: e('s_mov_b32 s64, s101'); nst[0]=1
e('v_xor_b32 v10, v10, v3'); e('v_lshlrev_b32 v10, 4, v10'); e('v_lshl_add_u32 v6, v3, 9, v10'); e('s_lshl_b32 %s, %s, 13'%(T1,W)); e('s_add_u32 %s, %s, %d'%(T1,T1,XR)); e('v_add_u32 v6, %s, v6'%T1)
e('v_lshrrev_b32 v3, 2, v1'); e('v_lshrrev_b32 v10, 5, v1'); e('v_lshlrev_b32 v10, 1, v10'); e('v_xor_b32 v10, v10, v1'); e('v_and_b32 v10, 3, v10'); e('v_lshlrev_b32 v10, 4, v10')
e('v_mul_u32_u24 v8, 3072, v3'); e('v_add_u32 v8, v8, v10'); e('v_mul_u32_u24 v9, 2752, v3'); e('v_add_u32 v9, v9, v10')
e('v_lshlrev_b32 v14, 4, v1')
e('s_mul_i32 %s, %s, 3072'%(T4,W))
e('s_lshl_b32 %s, %s, 6'%(WQB,CG)); e('s_add_u32 %s, %s, 2048'%(WQB,WQB))
e('s_and_b32 %s, %s, 1'%(WQA,CG)); e('s_lshl_b32 %s, %s, 10'%(WQA,WQA)); e('s_lshr_b32 %s, %s, 1'%(T0,CG)); e('s_lshl_b32 %s, %s, 7'%(T0,T0)); e('s_add_u32 %s, %s, %s'%(WQA,WQA,T0))
e('s_mul_i32 %s, %s, 3'%(W1A,CG)); e('s_min_u32 %s, %s, 40'%(W1A,W1A)); e('s_lshl_b32 %s, %s, 6'%(W1A,W1A))
e('s_add_u32 %s, %s, %s'%(ROT,ROT,KH))
WQR=[0,24576,49152,73728]; W1R=[0,24576,98304,98304+24576]
def wdma(q,c,j):
    if j==0:
        e('s_add_u32 %s, %s, %d'%(T2,ROT,2*c)); e('s_and_b32 %s, %s, 7'%(T2,T2)); e('s_lshl_b32 %s, %s, 2'%(T2,T2)); e('s_add_u32 %s, %s, %s'%(T2,T2,TG))
        if q: e('s_mul_i32 %s, %s, 49152'%(T2,T2)); e('s_add_u32 %s, %s, %s'%(T3,T2,WQB)); e('s_add_u32 %s, %s, %s'%(T2,T2,WQA))
        else: e('s_mul_i32 %s, %s, 44032'%(T2,T2)); e('s_add_u32 %s, %s, %s'%(T2,T2,W1A))
    if q and j==2: e('s_add_u32 m0, %s, %d'%(T4,WQR[c]+2048)); e('buffer_load_dwordx4 v%d, %s, %s offen lds'%(VWQ,WQ,T3))
    elif q: e('s_add_u32 m0, %s, %d'%(T4,WQR[c]+960*j)); e('buffer_load_dwordx4 v%d, %s, %s offen offset:%d lds'%(VWQ,WQ,T2,64*j))
    else: e('s_add_u32 m0, %s, %d'%(T4,W1R[c]+960*j)); e('buffer_load_dwordx4 v%d, %s, %s offen offset:%d lds'%(VW1,W1,T2,64*j))
XA=160
e('v_and_b32 v3, 15, v1'); e('v_lshrrev_b32 v10, 4, v1'); e('v_xor_b32 v11, v10, v3'); e('v_lshlrev_b32 v11, 4, v11'); e('v_lshl_add_u32 v11, v3, 9, v11')
e('s_lshl_b32 %s, %s, 14'%(T1,TG)); e('s_add_u32 %s, %s, %d'%(T1,T1,XR)); e('v_add_u32 v7, %s, v11'%T1)
e('v_lshrrev_b32 v11, 5, v1'); e('v_lshl_add_u32 v15, v11, 4, v3'); e('v_and_b32 v12, 1, v10'); e('v_lshl_add_u32 v15, v12, 5, v15'); e('v_lshlrev_b32 v15, 4, v15')
e('v_mul_u32_u24 v11, 3072, v11'); e('v_lshl_add_u32 v11, v12, 9, v11'); e('v_xor_b32 v12, %s, v12'%KH); e('v_lshl_add_u32 v11, v12, 5, v11')
e('v_bfe_u32 v3, v1, 2, 2'); e('v_lshl_add_u32 v11, v3, 6, v11'); e('v_and_b32 v3, 3, v1'); e('v_lshl_add_u32 v11, v3, 3, v11')
e('v_add_u32 v12, 49152, v11'); e('v_add_u32 v13, 98304, v11')
ST=144
for i in range(16):
    e('s_waitcnt vmcnt(%d)'%(PF-1))
    if i in (0,8): stamp(2)
    if i+PF<16: xld(i+PF)
    else: wdma(1,(i+PF-16)//3,(i+PF-16)%3)
    for r in range(4):
        u=16+8*i+2*r
        e('v_lshlrev_b32 v%d, 16, v%d'%(u,RAW+4*i+r)); e('v_and_b32 v%d, 0xffff0000, v%d'%(u+1,RAW+4*i+r))
    for r in range(4):
        u=v(16+8*i+2*r,2); s_=v(ST+2*(i&1),2); q_=v(ST+4+2*(i&1),2)
        if i<2 and r==0: e('v_pk_add_f32 %s, %s, 0'%(s_,u)); e('v_pk_mul_f32 %s, %s, %s'%(q_,u,u))
        else: e('v_pk_add_f32 %s, %s, %s'%(s_,s_,u)); e('v_pk_fma_f32 %s, %s, %s, %s'%(q_,u,u,q_))
stamp(2)
nq=[PF]
def wnext():
    if nq[0]<12: wdma(1,nq[0]//3,nq[0]%3); nq[0]+=1
for k in range(4): e('v_add_f32 v%d, v%d, v%d'%(ST+2*k,ST+2*k,ST+2*k+1))
for dpp in ('quad_perm:[1,0,3,2]','quad_perm:[2,3,0,1]','row_half_mirror'):
    for k in range(4): e.raw('  v_add_f32_dpp v%d, v%d, v%d %s row_mask:0xf bank_mask:0xf'%(ST+2*k,ST+2*k,ST+2*k,dpp)); e.pos+=1
for k in range(2):
    m,q=ST+2*k,ST+4+2*k
    e('v_mul_f32 v%d, 0xbb000000, v%d'%(m,m)); e('v_mul_f32 v%d, 0x3b000000, v%d'%(q,q)); e('v_fma_f32 v%d, -v%d, v%d, v%d'%(q,m,m,q)); e('v_max_f32 v%d, 0, v%d'%(q,q)); e('v_add_f32 v%d, 0x3727c5ac, v%d'%(q,q))
    e('v_rsq_f32 v%d, v%d'%(q,q)); e('v_mul_f32 v%d, v%d, v%d'%(m,m,q)); e('v_mov_b32 v%d, v%d'%(q+1,q)); e('v_mov_b32 v%d, v%d'%(m+1,m))
def xwrite(i): e('ds_write_b128 v6, %s offset:%d'%(v(RAW+4*i,4),(i&1)*4096+(((i>>1)&3)^(i&1))*128))
def norm(i,ST):
    L=[]
    for r in range(4): u=v(16+8*i+2*r,2); L.append('v_pk_fma_f32 %s, %s, %s, %s'%(u,u,v(ST+4+2*(i&1),2),v(ST+2*(i&1),2)))
    for r in range(4): L.append('v_cvt_pk_bf16_f32 v%d, v%d, v%d'%(RAW+4*i+r,16+8*i+2*r,17+8*i+2*r))
    return L
for i in range(8):
    for t in norm(i,ST): e(t)
    xwrite(i)
    if i%opt['wsp']==0: wnext()
while nq[0]<opt['wpre']: wnext()
XA=204
e('v_mov_b32 v%d, v7'%XA)
for s in range(1,4): e('v_xor_b32 v%d, %d, v7'%(XA+s,64*s))
e('s_waitcnt lgkmcnt(0)')
for r in range(8): e('v_mov_b32 v%d, v%d'%(208+r,ST+r))
e('s_mul_i32 %s, s7, 0x85ebca6b'%T0); e('s_add_u32 %s, %s, s6'%(T0,T0)); e('s_add_u32 s7, %s, 0x1234567'%T0); e('s_mul_i32 s6, s6, 0x9e3779b1'); e('s_add_u32 s6, s6, 0x7f4a7c15')
stamp(2); e('s_waitcnt vmcnt(%d)'%(nq[0]-3)); e('s_barrier')
stamp(3)
def xread(s):
    for T in range(2): e('ds_read_b128 %s, v%d offset:%d'%(v(XF+8*s+4*T,4),XA+(s&3),256*((s>>2)&1)+8192*T))
def wread(reg,s):
    a=reg[s//4]+(s&3)*6144; b=VR0+a//49152; a%=49152
    for j in range(3):
        for jj in range(2): e('ds_read_b64_tr_b16 %s, v%d offset:%d'%(v(WF+(s%3)*12+4*j+2*jj,2),b,a+1024*j+256*jj))
def bar(n): e('s_waitcnt vmcnt(%d)'%n); e('s_barrier')
def flag(stage):
    e('s_mov_b64 exec, 1'); e('s_lshl_b32 %s, %s, 3'%(T0,SID)); e('s_add_u32 %s, %s, %d'%(T0,T0,FL+2048*stage)); e('v_mov_b32 v4, s6'); e('v_mov_b32 v5, s7'); e('v_mov_b32 v3, 0')
    e('buffer_store_dwordx2 v[4:5], v3, %s, %s offen sc1'%(WS,T0)); e('s_mov_b64 exec, -1')
PK=208
def pack(j):
    for T in range(2):
        for r in range(2): e('v_cvt_pk_bf16_f32 v%d, v%d, v%d'%(PK+4*j+2*T+r,A+8*j+4*T+2*r,A+8*j+4*T+2*r+1))
    for r in range(2): e('v_permlane32_swap_b32 v%d, v%d'%(PK+4*j+r,PK+4*j+2+r))
def l2pf():
    e('s_lshr_b32 %s, s2, 3'%T0); e('s_lshl_b32 %s, %s, 3'%(T0,T0)); e('s_add_u32 %s, %s, %s'%(T0,T0,W)); e('s_mul_i32 %s, %s, 768'%(T0,T0))
    e('v_add_u32 v3, %s, v14'%T0); e('s_mov_b32 exec_hi, 0xffff')
    for k in (0,22,44,65): e('s_mov_b32 %s, %d'%(T3,k*16384)); e('buffer_load_dwordx4 v[244:247], v3, %s, %s offen'%(W2,T3))
    e('s_mov_b32 exec_hi, -1')
REG=WQR+W1R
lq=[]
def xr(s): xread(s); lq.extend([('x',s)]*2)
def wr(s): wread(REG,s); lq.extend([('w',s)]*6)
def lwait(tags):
    idx=[i for i,t in enumerate(lq) if t in tags]
    if idx:
        n=len(lq)-1-max(idx); e('s_waitcnt lgkmcnt(%d)'%min(n,15)); del lq[:max(idx)+1]
xr(0); wr(0); xr(1); wr(1)
fill=[t for i in range(8,16) for t in norm(i,208)]
XS={0:[2,3,4],1:[5,6,7],6:[8,9],7:[10,11],8:[12],9:[13],10:[14],11:[15]}
for s in range(32):
    q=s<16; A=ACC if q else 220
    if s in (1,2,4,6,8,10,14): stamp(2)
    if s==2: lwait([('x',7)]); bar(nq[0]-6)
    if s==6: lwait([('s',15)]); bar(3); assert nq[0]==12
    if s==10: bar(3)
    if s==14: lwait([('x',15)]); bar(3); e('v_mov_b32 v3, %d'%CNT); e('v_mov_b32 v10, 0'); e('ds_write_b32 v3, v10'); e('ds_write_b32 v3, v10 offset:4'); lq.extend([0,0])
    if s==18: bar(7)
    if s==22: bar(3+4*(0<opt['pe']<22)); e('s_cmp_lg_u32 %s, 0'%W); e('s_cbranch_scc1 L_f1'); flag(0); e.label('L_f1')
    if s==26: bar(4*(0<opt['pe']<26))
    lwait([('w',s),('x',s)])
    if s<30: wr(s+2)
    if s<6: wnext()
    dm={6:(0,0),7:(0,1),8:(0,2),10:(1,0),11:(1,1),12:(1,2),14:(2,0),15:(2,1),16:(2,2),18:(3,1),19:(3,2)}
    if s in dm: wdma(0,*dm[s])
    if s==opt['pe']: l2pf()
    xs=list(XS.get(s,[]))
    for j in range(3):
        for T in range(2):
            a,b=v(WF+(s%3)*12+4*j,4),v(XF+8*(s&15)+4*T,4)
            if q and j==2: a,b=b,a
            e('v_mfma_f32_16x16x32_bf16 %s, %s, %s, %s'%(v(A+8*j+4*T,4),a,b,v(A+8*j+4*T,4) if s&15 else '0'))
            if s<4:
                for k in range(3 if j*2+T<4 else 2): e(fill.pop(0))
            if T==0 and xs: xr(xs.pop(0))
            if 2<=s<6 and T==1 and j<2: i=8+2*(s-2)+j; xwrite(i); lq.append(('s',i))
    if s==16:
        A=ACC
        e('s_and_b32 %s, %s, 1'%(T0,CG)); e('s_cmp_eq_u32 %s, 0'%T0); e('s_cselect_b32 %s, 0x3eb8aa3b, 1.0'%T1)
        for r in range(16): e('v_mul_f32 v%d, %s, v%d'%(ACC+r,T1,ACC+r))
        e('s_lshl_b32 %s, %s, 21'%(T0,T0)); e('s_lshl_b32 %s, %s, 15'%(T1,QBI)); e('s_add_u32 %s, %s, %s'%(T0,T0,T1))
        e('s_lshr_b32 %s, %s, 1'%(T3,CG)); e('s_lshl_b32 %s, %s, 2'%(T3,T3)); e('s_add_u32 %s, %s, %s'%(T3,T3,KH)); e('s_lshl_b32 %s, %s, 10'%(T3,T3)); e('s_add_u32 %s, %s, %s'%(T0,T0,T3))
        e('s_lshl_b32 %s, %s, 1'%(T3,CG)); e('s_add_u32 %s, %s, %s'%(T3,T3,KH)); e('s_lshl_b32 %s, %s, 10'%(T3,T3)); e('s_add_u32 %s, %s, %s'%(T1,T1,T3)); e('s_add_u32 %s, %s, %d'%(T1,T1,VB))
        for j in range(3):
            pack(j)
            if j<2: e('buffer_store_dwordx4 %s, v15, %s, %s offen offset:%d sc1'%(v(PK+4*j,4),WS,T0,2048*j))
            else: e('buffer_store_dwordx4 %s, v14, %s, %s offen sc1'%(v(PK+4*j,4),WS,T1))
        wdma(0,3,0)
    if s==15: stamp(3)
stamp(3)
def poll(name,voff,base,n=1):
    e('s_mov_b32 %s, 0'%SCNT); e('s_mov_b32 %s, %d'%(T3,base)); e.label('L_p'+name)
    for i in range(n): e('buffer_load_dwordx2 %s, v%d, %s, %s offen offset:%d sc1'%(v(244+2*i,2),voff,WS,T3,512*i))
    e('s_waitcnt vmcnt(0)')
    for i in range(n):
        e('v_cmp_ne_u64 vcc, s[6:7], %s'%v(244+2*i,2)); e.nop(4); e('s_cbranch_vccnz L_r'+name)
    e('s_branch L_q'+name); e.label('L_r'+name)
    e('s_sleep 4'); e('s_add_u32 %s, %s, 1'%(SCNT,SCNT)); e('s_cmp_lt_u32 %s, 0x40000'%SCNT); e('s_cbranch_scc1 L_p'+name); e.label('L_q'+name)
KF,QF,VF=16,52,56
KV=49152
e('s_lshl_b32 %s, %s, 4'%(T0,RB)); e('s_sub_u32 %s, %s, 32'%(T0,T0)); e('v_min_u32 v6, 47, v1'); e('v_add_u32 v6, %s, v6'%T0); e('v_max_i32 v6, 0, v6'); e('v_lshlrev_b32 v6, 3, v6')
poll('1',6,FL); stamp()
e('s_lshl_b32 %s, %s, 21'%(T1,KH)); e('s_lshl_b32 %s, %s, 11'%(T0,CG)); e('s_add_u32 %s, %s, %s'%(T1,T1,T0)); e('s_add_u32 %s, %s, %d'%(T1,T1,KB))
e('s_mul_i32 %s, %s, 24576'%(T2,KH)); e('s_lshl_b32 %s, %s, 11'%(T0,TG)); e('s_add_u32 %s, %s, %s'%(T2,T2,T0))
for i in range(3):
    e('s_sub_i32 %s, %s, %d'%(T3,QBI,4*i)); e('s_max_i32 %s, %s, 0'%(T3,T3)); e('s_lshl_b32 %s, %s, 15'%(T3,T3)); e('s_add_u32 %s, %s, %s'%(T3,T3,T1))
    e('s_add_u32 m0, %s, %d'%(T2,KV+(2-i)*8192))
    for c in range(2): e('buffer_load_dwordx4 v14, %s, %s offen offset:%d sc1 lds'%(WS,T3,1024*c))
e('s_lshl_b32 %s, %s, 1'%(T1,CG)); e('s_add_u32 %s, %s, %s'%(T1,T1,KH)); e('s_lshl_b32 %s, %s, 10'%(T1,T1))
e('s_lshl_b32 %s, %s, 15'%(T0,QBI)); e('s_add_u32 %s, %s, %s'%(T3,T0,T1)); e('buffer_load_dwordx4 %s, v14, %s, %s offen sc1'%(v(QF,4),WS,T3))
A=220; EX=144
e('s_mul_i32 %s, %s, 86'%(T0,QBI)); e('s_lshr_b32 %s, %s, 5'%(T1,W1A)); e('s_add_u32 %s, %s, %s'%(T0,T0,T1)); e('s_add_u32 %s, %s, %s'%(T0,T0,KH)); e('s_lshl_b32 %s, %s, 10'%(T0,T0)); e('s_add_u32 %s, %s, %d'%(T0,T0,HB))
e('s_mov_b32 s4, 0xbfb8aa3b'); e('s_mov_b32 s5, 0xbfb8aa3b')
for j in range(3):
    for r in range(0,8,2): e('v_pk_mul_f32 %s, %s, s[4:5]'%(v(EX+r,2),v(A+8*j+r,2)))
    for r in range(8): e('v_exp_f32 v%d, v%d'%(EX+r,EX+r))
    for r in range(0,8,2): e('v_pk_add_f32 %s, %s, 1.0 op_sel_hi:[1,0]'%(v(EX+r,2),v(EX+r,2)))
    for r in range(8): e('v_rcp_f32 v%d, v%d'%(EX+r,EX+r))
    for r in range(0,8,2): e('v_pk_mul_f32 %s, %s, %s'%(v(A+8*j+r,2),v(A+8*j+r,2),v(EX+r,2)))
    pack(j)
    if j==2: e('s_add_u32 %s, %s, 4096'%(T0,T0))
    e('buffer_store_dwordx4 %s, v15, %s, %s offen offset:%d sc1'%(v(PK+4*j,4),WS,T0,2048*(j&1)))
stamp()
e('v_lshrrev_b32 v3, 2, v1'); e('v_and_b32 v10, 3, v1'); e('v_lshlrev_b32 v10, 4, v10'); e('v_lshl_add_u32 v8, v3, 10, v10')
e('s_mul_i32 %s, %s, 22'%(T5,KQ)); e('s_cmp_eq_u32 %s, 3'%KQ); e('s_subb_u32 %s, %s, 0'%(T5,T5))
e('s_add_u32 %s, %s, %s'%(T2,T5,TG2)); e('s_lshl_b32 %s, %s, 14'%(T2,T2)); e('s_lshl_b32 %s, %s, 7'%(T0,CB)); e('s_add_u32 %s, %s, %s'%(T2,T2,T0))
e('s_lshl_b32 %s, %s, 11'%(T4,KQ)); e('s_lshl_b32 %s, %s, 13'%(T0,TG2)); e('s_add_u32 %s, %s, %s'%(T4,T4,T0))
def slot(u): return ((u+12)%18)*8192
def w3dma(u):
    if u==22:
        e('s_lshl_b32 %s, %s, 3'%(T2,KQ)); e('s_add_u32 %s, %s, %s'%(T2,T2,TG2)); e('s_lshl_b32 %s, %s, 14'%(T2,T2)); e('s_lshl_b32 %s, %s, 7'%(T0,CB)); e('s_add_u32 %s, %s, %s'%(T2,T2,T0))
    for j in range(2):
        e('s_add_u32 m0, %s, %d'%(T4,slot(u)+960*j)); e('buffer_load_dwordx4 v8, %s, %s offen offset:%d lds'%(W2 if u<22 else WO,T2,64*j))
    e('s_add_u32 %s, %s, 32768'%(T2,T2))
S,NM,MD,MF,O,P=80,128,160,176,192,224
e('v_and_b32 v3, 31, v1'); e('v_lshrrev_b32 v10, 5, v1'); e('v_lshlrev_b32 v10, 2, v10'); e('v_sub_u32 v3, v3, v10'); e('v_mov_b32 v10, 0xf149f2ca')
for r in range(16):
    e('v_cmp_le_i32 vcc, %d, v3'%((r&3)+8*(r>>2))); e('v_cndmask_b32 v%d, v10, 0, vcc'%(MD+r)); e('v_cndmask_b32 v%d, 0, v10, vcc'%(MF+r))
def smf(d,c): e('v_mfma_f32_32x32x16_bf16 %s, %s, %s, %s'%(v(S+16*(d%3),16),v(KF+4*d,4),v(QF,4),c))
for r in range(16): e('v_mov_b32 v%d, %s'%(VF+r,ONES))
e('s_lshl_b32 %s, %s, 1'%(T0,TG)); e('s_add_u32 %s, %s, %s'%(T0,T0,KH)); e('s_lshl_b32 %s, %s, 10'%(T0,T0)); e('s_add_u32 %s, %s, %d'%(T0,T0,KV)); e('v_add_u32 v7, %s, v14'%T0)
e('v_lshrrev_b32 v3, 5, v1'); e('v_and_b32 v10, 15, v1'); e('v_lshlrev_b32 v10, 4, v10'); e('v_lshl_add_u32 v10, v3, 8, v10'); e('s_add_u32 %s, %s, 24576'%(T0,T0)); e('v_add_u32 v9, %s, v10'%T0)
bar(3); stamp()
for d in range(9): e('ds_read_b128 %s, v7 offset:%d'%(v(KF+4*d,4),(8-d)*2048))
def vread(d):
    e('s_mov_b32 exec_lo, 0xffff'); e('s_mov_b32 exec_hi, 0xffff')
    for c in range(2): e('ds_read_b128 %s, v9 offset:%d'%(v(VF+8*(d&1)+4*c,4),(8-d)*2048+512*c))
    e('s_mov_b64 exec, -1')
def l2pf3():
    e('s_lshr_b32 %s, s2, 3'%T0); e('s_lshl_b32 %s, %s, 3'%(T0,T0)); e('s_add_u32 %s, %s, %s'%(T0,T0,W)); e('s_lshl_b32 %s, %s, 11'%(T1,T0)); e('s_mul_i32 %s, %s, 640'%(T0,T0))
    e('v_add_u32 v3, %s, v14'%T0); e('s_mov_b32 exec_hi, 0xff')
    for k in (12,34,56,76): e('s_mov_b32 %s, %d'%(T3,k*16384)); e('buffer_load_dwordx4 v[240:243], v3, %s, %s offen'%(W2,T3))
    e('s_mov_b32 exec_hi, -1')
    for k in range(2): e('buffer_load_dwordx4 v[240:243], v14, %s, %s offen offset:%d'%(WO,T1,1024*k))
if opt['pfp']==3: l2pf3()
for u in range(0,2*opt['w0'],2): w3dma(u)
e('s_waitcnt lgkmcnt(0)')
c1=lambda d: v(MD,16) if d==0 else v(MF,16) if d==8 else '0'
smf(0,c1(0)); smf(1,c1(1))
for d in range(9):
    if d+2<9: smf(d+2,c1(d+2))
    b=S+16*(d%3)
    if d==0: e('v_max_f32 v4, v%d, v%d'%(b,b+1)); e('v_max_f32 v5, v%d, v%d'%(b+2,b+3))
    else: e('v_max3_f32 v4, v%d, v%d, v4'%(b,b+1)); e('v_max3_f32 v5, v%d, v%d, v5'%(b+2,b+3))
    for r in range(4,16,2): e('v_max3_f32 v%d, v%d, v%d, v%d'%(4+((r>>1)&1),b+r,b+r+1,4+((r>>1)&1)))
    if d<8: e('s_cmp_eq_u32 %s, %d'%(QBI,d)); e('s_cbranch_scc1 L_a1')
e.label('L_a1')
e('v_max_f32 v4, v4, v5'); e('v_mov_b32 v5, v4'); e('v_permlane32_swap_b32 v4, v5'); e('v_max_f32 v4, v4, v5')
e.nop(8)
for r in range(16): e('v_sub_f32 v%d, v%d, v4'%(MD+r,MD+r))
for r in range(16): e('v_sub_f32 v%d, 0, v4'%(NM+r))
for r in range(16): e('v_sub_f32 v%d, v%d, v4'%(MF+r,MF+r))
def sig(off,val,lbl):
    e('v_mov_b32 v3, %d'%(CNT+off)); e('v_mov_b32 v10, 1'); e('s_mov_b64 exec, 1'); e('ds_add_rtn_u32 v10, v3, v10'); e('s_waitcnt lgkmcnt(0)'); e('s_mov_b64 exec, -1')
    e('v_readfirstlane_b32 %s, v10'%T0); e('s_cmp_lg_u32 %s, 7'%T0); e('s_cbranch_scc1 L_'+lbl); flag(val); e.label('L_'+lbl)
e('s_waitcnt vmcnt(%d)'%(2*opt['w0']+(opt['pfp']==1)+6*(opt['pfp']==3)))
sig(0,1,'f2')
e('s_lshr_b32 %s, %s, 1'%(T0,RB2)); e('s_lshl_b32 %s, %s, 7'%(T0,T0)); e('v_and_b32 v6, 15, v1'); e('v_lshlrev_b32 v6, 3, v6'); e('v_add_u32 v6, %s, v6'%T0)
e('s_mov_b32 %s, %d'%(T1,FL+2048))
vread(0)
c2=lambda d: v(MD,16) if d==0 else v(MF,16) if d==8 else v(NM,16)
smf(0,c2(0))
for d in range(9):
    if d<8:
        e('s_cmp_lg_u32 %s, %d'%(QBI,d)); e('s_cbranch_scc1 L_m%d'%d)
        for r in range(16): e('v_mov_b32 v%d, 0xf149f2ca'%(NM+r)); e('v_mov_b32 v%d, 0xf149f2ca'%(MF+r))
        e.label('L_m%d'%d)
        smf(d+1,c2(d+1)); vread(d+1)
    if d+opt['w0']<6: w3dma(2*(d+opt['w0']))
    if d==6-opt['w0'] and opt['pfp']==2: l2pf3(); e('s_mov_b32 %s, %d'%(T1,FL+2048))
    if d==8: e('buffer_load_dwordx2 v[244:245], v6, %s, %s offen sc1'%(WS,T1))
    b=S+16*(d%3); p=P+8*(d&1)
    for c in range(2):
        for r in range(8): e('v_exp_f32 v%d, v%d'%(b+8*c+r,b+8*c+r))
        for r in range(4): e('v_cvt_pk_bf16_f32 v%d, v%d, v%d'%(p+4*c+r,b+8*c+2*r,b+8*c+2*r+1))
    e('s_waitcnt lgkmcnt(%d)'%(2 if d<8 else 0))
    for c in range(2): e('v_mfma_f32_32x32x16_bf16 %s, %s, %s, %s'%(v(O,16),v(VF+8*(d&1)+4*c,4),v(p+4*c,4),v(O,16) if d+c else '0'))

e('v_rcp_f32 v4, v%d'%(O+8))
for r in range(8): e('v_mul_f32 v%d, v%d, v4'%(O+r,O+r))
for r in range(4): e('v_cvt_pk_bf16_f32 v%d, v%d, v%d'%(O+8+r,O+2*r,O+2*r+1))
stamp()
e('s_lshl_b32 %s, %s, 5'%(T0,QBI)); e('s_lshl_b32 %s, %s, 1'%(T1,CG)); e('s_add_u32 %s, %s, %s'%(T0,T0,T1)); e('s_add_u32 %s, %s, %s'%(T0,T0,KH)); e('s_lshl_b32 %s, %s, 10'%(T0,T0)); e('s_add_u32 %s, %s, %d'%(T0,T0,OB))
e('buffer_store_dwordx4 %s, v14, %s, %s offen sc1'%(v(O+8,4),WS,T0))
def check(name,base,n):
    e('s_waitcnt vmcnt(%d)'%n); e('v_cmp_ne_u64 vcc, s[6:7], v[244:245]'); e.nop(4); e('s_cbranch_vccz L_q'+name); poll(name,6,base)
HF,A3,W3,XR=16,136,168,204
HS,OS=WQA,WQB
e('s_lshl_b32 %s, %s, 1'%(T1,RB2)); e('s_add_u32 %s, %s, %s'%(T1,T1,TG2))
e('s_mul_i32 %s, %s, 86'%(HS,T1)); e('s_add_u32 %s, %s, %s'%(HS,HS,T5)); e('s_lshl_b32 %s, %s, 10'%(HS,HS)); e('s_add_u32 %s, %s, %d'%(HS,HS,HB))
e('s_lshl_b32 %s, %s, 5'%(OS,T1)); e('s_lshl_b32 %s, %s, 3'%(T3,KQ)); e('s_add_u32 %s, %s, %s'%(OS,OS,T3)); e('s_lshl_b32 %s, %s, 10'%(OS,OS)); e('s_add_u32 %s, %s, %d'%(OS,OS,OB))
e('v_lshrrev_b32 v3, 3, v0'); e('v_and_b32 v10, 7, v0'); e('v_lshlrev_b32 v10, 4, v10'); e('v_lshl_add_u32 v9, v3, 10, v10')
e('v_lshrrev_b32 v10, 5, v1'); e('v_bfe_u32 v3, v1, 2, 2'); e('v_lshl_add_u32 v3, v10, 2, v3'); e('v_lshlrev_b32 v3, 6, v3')
e('v_and_b32 v11, 16, v1'); e('v_lshl_add_u32 v3, v11, 1, v3'); e('v_and_b32 v11, 3, v1'); e('v_lshl_add_u32 v3, v11, 3, v3')
e('s_lshl_b32 %s, %s, 11'%(T0,KQ)); e('v_add_u32 v11, %s, v3'%T0); e('v_add_u32 v12, 49152, v11'); e('v_add_u32 v13, 98304, v11')
check('2',FL+2048,1); stamp()
vq=['o']
def vw(tags,extra=''):
    idx=[i for i,t in enumerate(vq) if t in tags]
    if idx: n=len(vq)-1-max(idx); del vq[:max(idx)+1]; e('s_waitcnt vmcnt(%d) %s'%(n,extra))
    elif extra: e('s_waitcnt '+extra)
def ald(u):
    k=u if u<22 else u-22; r=HS if u<22 else OS
    e('buffer_load_dwordx4 %s, v14, %s, %s offen offset:%d sc1'%(v(HF+4*u,4),WS,r,1024*(k&3))); vq.append(('a',u))
    if k&3==3: e('s_add_u32 %s, %s, 4096'%(r,r))
def w3d(u): w3dma(u); vq.extend([('w',u)]*2)
LA=opt['la']
for u in range(LA): ald(u)
e('s_barrier'); stamp()
def w3read(u):
    a=slot(u); b=VR0+a//49152; a%=49152
    for j in range(2):
        for jj in range(2): e('ds_read_b64_tr_b16 %s, v%d offset:%d'%(v(W3+(u%3)*8+4*j+2*jj,2),b,a+1024*j+512*jj))
w3read(0); w3read(1)
WD={1:12,3:14,5:16,6:18,8:20,10:22,16:24,17:26,18:28}
na=[LA]; PU=opt['pu']
for u in range(30):
    if u==6: e('s_barrier')
    if u==10: vw([('w',16)]); e('s_barrier')
    if u==16: vw([('w',22)]); e('s_barrier'); stamp()
    if u==22: vw([('w',28)]); e('s_barrier'); stamp()
    if u==PU-2: e('s_mov_b32 %s, %d'%(T1,FL+4096)); e('buffer_load_dwordx2 v[244:245], v6, %s, %s offen sc1'%(WS,T1)); vq.append('p')
    if u==PU: n=len(vq)-1-vq.index('p'); del vq[:vq.index('p')+1]; check('3',FL+4096,n)
    if u+2<30: w3read(u+2)
    if u in WD: w3d(WD[u])
    for k in range(2 if u>=PU else 1):
        if na[0]<(30 if u>=PU else 22): ald(na[0]); na[0]+=1
    if u==20:
        e('s_lshl_b32 %s, %s, 16'%(T3,RB2)); e('s_lshl_b32 %s, %s, 7'%(T0,CB)); e('s_add_u32 %s, %s, %s'%(T3,T3,T0))
        e('buffer_load_dwordx4 %s, v9, %s, %s offen'%(v(XR,4),X,T3)); vq.append('x')
    lg=8 if u+2<30 else 4 if u+1<30 else 0
    vw([('a',u)],'lgkmcnt(%d)'%lg)
    if u==21: e('s_cmp_ge_u32 %s, 2'%KQ); e('s_cbranch_scc1 L_s21')
    for j in range(2): e('v_mfma_f32_32x32x16_bf16 %s, %s, %s, %s'%(v(A3+16*j,16),v(W3+(u%3)*8+4*j,4),v(HF+4*u,4),v(A3+16*j,16) if u else '0'))
    if u==21: e.label('L_s21')
    if u==0: sig(4,2,'f3')
    if u==2:
        e('s_or_b32 %s, %s, %s'%(T0,SID,W)); e('s_cmp_lg_u32 %s, 0'%T0); e('s_cbranch_scc1 L_noep')
        e('v_lshlrev_b32 v7, 3, v1'); poll('e',7,FL,4)
        e('v_mov_b32 v4, s6'); e('v_mov_b32 v5, s7'); e('v_mov_b32 v3, 0'); e('s_mov_b32 %s, %d'%(T0,EP)); e('s_mov_b64 exec, 1'); e('buffer_store_dwordx2 v[4:5], v3, %s, %s offen sc1'%(WS,T0)); e('s_mov_b64 exec, -1')
        e.label('L_noep')
vw(['x'])
stamp()
e('s_barrier')
e('s_mul_i32 %s, %s, 17408'%(T0,KQ)); e('s_mul_i32 %s, %s, 8704'%(T3,TG2)); e('s_add_u32 %s, %s, %s'%(T0,T0,T3))
e('v_and_b32 v3, 31, v1'); e('v_mul_u32_u24 v3, 272, v3'); e('v_lshrrev_b32 v10, 5, v1'); e('v_lshl_add_u32 v3, v10, 4, v3'); e('v_add_u32 v3, %s, v3'%T0)
for j in range(2):
    for q in range(4): e('ds_write_b128 v3, %s offset:%d'%(v(A3+16*j+4*q,4),128*j+32*q))
e('v_lshrrev_b32 v3, 3, v0'); e('v_mul_u32_u24 v3, 272, v3'); e('v_and_b32 v10, 7, v0'); e('v_lshl_add_u32 v3, v10, 5, v3')
for r in range(4): e('v_lshlrev_b32 v%d, 16, v%d'%(64+2*r,XR+r)); e('v_and_b32 v%d, 0xffff0000, v%d'%(65+2*r,XR+r))
e('s_waitcnt lgkmcnt(0)'); e('s_barrier')
for k in range(4):
    for i in range(2): e('ds_read_b128 %s, v3 offset:%d'%(v(16+8*k+4*i,4),17408*k+16*i))
for k in range(4):
    e('s_waitcnt lgkmcnt(%d)'%(6-2*k))
    for r in range(8): e('v_add_f32 v%d, v%d, v%d'%(64+r,64+r,16+8*k+r))
for r in range(4): e('v_cvt_pk_bf16_f32 v%d, v%d, v%d'%(72+r,64+2*r,65+2*r))
e('s_lshl_b32 %s, %s, 16'%(T3,RB2)); e('s_lshl_b32 %s, %s, 7'%(T0,CB)); e('s_add_u32 %s, %s, %s'%(T3,T3,T0))
e('buffer_store_dwordx4 v[72:75], v9, %s, %s offen'%(OUT,T3))
if opt['stamp']:
    stamp(3); e('s_memrealtime s[62:63]'); e('s_waitcnt lgkmcnt(0)')
    e('s_lshl_b32 %s, s2, 3'%T0); e('s_add_u32 %s, %s, %s'%(T0,T0,W)); e('s_lshl_b32 %s, %s, 7'%(T0,T0)); e('s_add_u32 %s, %s, %d'%(T0,T0,15<<20))
    e('v_mov_b32 v3, 0'); e('s_mov_b64 exec, 1')
    for i in range(nst[0]+2):
        e('v_mov_b32 v10, s%d'%(60+2*i)); e('buffer_store_dword v10, v3, %s, %s offen offset:%d'%(WS,T0,4*i))
e.label('L_end'); e('s_endpgm')
hdr=open('cdna_kernels/%s.s.ref'%NAME).read().split('; Override')[0]
txt=hdr+'''; @launch grid=(256,1,1) block=(512,1,1) lds=163840
.amdgcn_target "amdgcn-amd-amdhsa--gfx950"
.text
.globl %s_kernel
.p2align 8
.type %s_kernel,@function
%s_kernel:
'''%(NAME,NAME,NAME)+e.text()+'''.section .rodata,"a"
.p2align 6
.amdhsa_kernel %s_kernel
  .amdhsa_next_free_vgpr 256
  .amdhsa_next_free_sgpr 102
  .amdhsa_accum_offset 256
  .amdhsa_group_segment_fixed_size 0
  .amdhsa_kernarg_size 72
  .amdhsa_user_sgpr_count 2
  .amdhsa_user_sgpr_kernarg_segment_ptr 1
  .amdhsa_system_sgpr_workgroup_id_x 1
.end_amdhsa_kernel
'''%NAME
open(sys.argv[1],'w').write(txt)
```

```python
import sys
from emit import E
NAME='parallel_sum__sliding_block__dense_activation_silu__prompt'
opt=dict(stamp=0,map=1,rot=1,pf=4,wsp=16,il=1,pr=1,fs=20,wpre=6,w0=0,la=6,pu=19,pfp=0,pe=21,pn=7,p1=30,fin=1,ms=1,ost=0)
for a in sys.argv[2:]:
    k,v=a.split('='); opt[k]=int(v)
e=E()
QB,KB,VB,OB,HB=0,2<<20,4<<20,6<<20,8<<20
X,WQ,WO,W1,W2,OUT,DBG,WS=['s[%d:%d]'%(8+4*i,11+4*i) for i in range(8)]
RB,CG,W,TG,KH,ONES,QBI,T0,T1,T2,T3,RB2,CB,KQ,TG2,SID,T4,T5,SCNT,ROT,TGS,WQA,WQB,W1A='s40 s41 s42 s43 s44 s45 s46 s47 s48 s49 s50 s51 s52 s53 s54 s55 s56 s57 s58 s59 s3 s98 s99 s100'.split()
EP=14<<20; FL=EP+4096
def v(a,n=1): return 'v%d'%a if n==1 else 'v[%d:%d]'%(a,a+n-1)
nst=[0]
def stamp(l=1):
    if opt['stamp']&l and nst[0]<16:
        i=nst[0]; nst[0]+=1
        e('s_memtime s[%d:%d]'%(64+2*i,65+2*i)); e('s_waitcnt lgkmcnt(0)')
VWQ,VW1,VR0=8,9,11
XF,ACC,WF,RAW=16,144,168,192
CNT=160768; XR=98304
e('s_cmp_ge_u32 s2, 256'); e('s_cbranch_scc1 L_end')
if opt['stamp']: e('s_memrealtime s[60:61]'); e('s_memtime s[96:97]'); e('s_waitcnt lgkmcnt(0)'); e('s_mov_b32 s101, s96')
e('s_load_dwordx16 s[64:79], s[0:1], 0'); e('s_load_dwordx2 s[80:81], s[0:1], 64')
e('v_lshrrev_b32 v3, 6, v0'); e('v_and_b32 v1, 63, v0'); e('v_readfirstlane_b32 %s, v3'%W)
e('s_and_b32 %s, s2, 7'%T0); e('s_lshr_b32 %s, s2, 3'%T1)
if opt['map']==0:
    e('s_lshr_b32 %s, %s, 4'%(RB,T1)); e('s_lshl_b32 %s, %s, 1'%(T2,T0)); e('s_add_u32 %s, %s, %s'%(RB,RB,T2)); e('s_and_b32 %s, %s, 15'%(CG,T1))
else:
    e('s_lshr_b32 %s, %s, 3'%(RB,T1)); e('s_lshr_b32 %s, %s, 1'%(T2,T0)); e('s_lshl_b32 %s, %s, 2'%(T2,T2)); e('s_add_u32 %s, %s, %s'%(RB,RB,T2))
    e('s_and_b32 %s, %s, 7'%(CG,T1)); e('s_and_b32 %s, %s, 1'%(T2,T0)); e('s_lshl_b32 %s, %s, 3'%(T2,T2)); e('s_add_u32 %s, %s, %s'%(CG,CG,T2))
e('s_lshr_b32 %s, %s, 3'%(RB2,T1)); e('s_lshl_b32 %s, %s, 2'%(T2,T0)); e('s_add_u32 %s, %s, %s'%(RB2,RB2,T2)); e('s_and_b32 %s, %s, 7'%(CB,T1))
e('s_lshl_b32 %s, %s, 4'%(SID,RB)); e('s_add_u32 %s, %s, %s'%(SID,SID,CG))
e('s_and_b32 %s, %s, 3'%(TG,W)); e('s_lshr_b32 %s, %s, 2'%(KH,W)); e('s_and_b32 %s, %s, 1'%(TG2,W)); e('s_lshr_b32 %s, %s, 1'%(KQ,W))
e('s_lshl_b32 %s, %s, 2'%(QBI,RB)); e('s_add_u32 %s, %s, %s'%(QBI,QBI,TG)); e('s_mov_b32 %s, 0x3f803f80'%ONES)
if opt['rot']: e('s_lshl_b32 %s, %s, 1'%(ROT,RB)); e('s_add_u32 %s, %s, %s'%(ROT,ROT,CG)); e('s_and_b32 %s, %s, 7'%(ROT,ROT))
else: e('s_mov_b32 %s, 0'%ROT)
e('v_lshrrev_b32 v3, 3, v1'); e('v_and_b32 v10, 7, v1'); e('v_lshlrev_b32 v4, 4, v10'); e('v_lshl_add_u32 v4, v3, 10, v4'); e('v_add_u32 v5, 8192, v4')
e('s_lshl_b32 %s, %s, 17'%(T0,RB)); e('s_lshl_b32 %s, %s, 14'%(T1,W)); e('s_add_u32 %s, %s, %s'%(T0,T0,T1))
e('s_waitcnt lgkmcnt(0)')
sz=[2097152,1572864,524288,1409024,1409024,2097152,256,16<<20]
src=[64,66,68,72,74,76,78,80]
def srd(i):
    b=8+4*i
    e('s_mov_b32 s%d, s%d'%(b,src[i])); e('s_mov_b32 s%d, s%d'%(b+1,src[i]+1)); e('s_mov_b32 s%d, %d'%(b+2,sz[i])); e('s_mov_b32 s%d, 0x20000'%(b+3))
srd(0)
PF=opt['pf']
e('s_mov_b32 %s, %s'%(T5,T0)); e('s_mov_b32 %s, %s'%(SCNT,ROT))
def xld(i):
    sg,rg=i>>1,i&1
    if rg==0: e('s_add_u32 %s, %s, %d'%(TGS,SCNT,sg)); e('s_and_b32 %s, %s, 7'%(TGS,TGS)); e('s_lshl_b32 %s, %s, 7'%(TGS,TGS)); e('s_add_u32 %s, %s, %s'%(TGS,TGS,T5))
    e('buffer_load_dwordx4 %s, v%d, %s, %s offen'%(v(RAW+4*i,4),4+rg,X,TGS))
for i in range(PF): xld(i)
e('s_add_u32 s4, s80, %d'%EP); e('s_addc_u32 s5, s81, 0'); e('s_load_dwordx2 s[6:7], s[4:5], 0')
for i in range(1,8): srd(i)
if opt['stamp']: e('s_mov_b32 s64, s101'); nst[0]=1
e('v_xor_b32 v10, v10, v3'); e('v_lshlrev_b32 v10, 4, v10'); e('v_lshl_add_u32 v6, v3, 9, v10'); e('s_lshl_b32 %s, %s, 13'%(T1,W)); e('s_add_u32 %s, %s, %d'%(T1,T1,XR)); e('v_add_u32 v6, %s, v6'%T1)
e('v_lshrrev_b32 v3, 2, v1'); e('v_lshrrev_b32 v10, 5, v1'); e('v_lshlrev_b32 v10, 1, v10'); e('v_xor_b32 v10, v10, v1'); e('v_and_b32 v10, 3, v10'); e('v_lshlrev_b32 v10, 4, v10')
e('v_mul_u32_u24 v8, 3072, v3'); e('v_add_u32 v8, v8, v10'); e('v_mul_u32_u24 v9, 2752, v3'); e('v_add_u32 v9, v9, v10')
e('v_lshlrev_b32 v14, 4, v1')
e('s_mul_i32 %s, %s, 3072'%(T4,W))
e('s_lshl_b32 %s, %s, 6'%(WQB,CG)); e('s_add_u32 %s, %s, 2048'%(WQB,WQB))
e('s_and_b32 %s, %s, 1'%(WQA,CG)); e('s_lshl_b32 %s, %s, 10'%(WQA,WQA)); e('s_lshr_b32 %s, %s, 1'%(T0,CG)); e('s_lshl_b32 %s, %s, 7'%(T0,T0)); e('s_add_u32 %s, %s, %s'%(WQA,WQA,T0))
e('s_mul_i32 %s, %s, 3'%(W1A,CG)); e('s_min_u32 %s, %s, 40'%(W1A,W1A)); e('s_lshl_b32 %s, %s, 6'%(W1A,W1A))
e('s_add_u32 %s, %s, %s'%(ROT,ROT,KH))
WQR=[0,24576,49152,73728]; W1R=[0,24576,98304,98304+24576]
def wdma(q,c,j):
    if j==0:
        e('s_add_u32 %s, %s, %d'%(T2,ROT,2*c)); e('s_and_b32 %s, %s, 7'%(T2,T2)); e('s_lshl_b32 %s, %s, 2'%(T2,T2)); e('s_add_u32 %s, %s, %s'%(T2,T2,TG))
        if q: e('s_mul_i32 %s, %s, 49152'%(T2,T2)); e('s_add_u32 %s, %s, %s'%(T3,T2,WQB)); e('s_add_u32 %s, %s, %s'%(T2,T2,WQA))
        else: e('s_mul_i32 %s, %s, 44032'%(T2,T2)); e('s_add_u32 %s, %s, %s'%(T2,T2,W1A))
    if q and j==2: e('s_add_u32 m0, %s, %d'%(T4,WQR[c]+2048)); e('buffer_load_dwordx4 v%d, %s, %s offen lds'%(VWQ,WQ,T3))
    elif q: e('s_add_u32 m0, %s, %d'%(T4,WQR[c]+960*j)); e('buffer_load_dwordx4 v%d, %s, %s offen offset:%d lds'%(VWQ,WQ,T2,64*j))
    else: e('s_add_u32 m0, %s, %d'%(T4,W1R[c]+960*j)); e('buffer_load_dwordx4 v%d, %s, %s offen offset:%d lds'%(VW1,W1,T2,64*j))
XA=160
e('v_and_b32 v3, 15, v1'); e('v_lshrrev_b32 v10, 4, v1'); e('v_xor_b32 v11, v10, v3'); e('v_lshlrev_b32 v11, 4, v11'); e('v_lshl_add_u32 v11, v3, 9, v11')
e('s_lshl_b32 %s, %s, 14'%(T1,TG)); e('s_add_u32 %s, %s, %d'%(T1,T1,XR)); e('v_add_u32 v7, %s, v11'%T1)
e('v_lshrrev_b32 v11, 5, v1'); e('v_lshl_add_u32 v15, v11, 4, v3'); e('v_and_b32 v12, 1, v10'); e('v_lshl_add_u32 v15, v12, 5, v15'); e('v_lshlrev_b32 v15, 4, v15')
e('v_mul_u32_u24 v11, 3072, v11'); e('v_lshl_add_u32 v11, v12, 9, v11'); e('v_xor_b32 v12, %s, v12'%KH); e('v_lshl_add_u32 v11, v12, 5, v11')
e('v_bfe_u32 v3, v1, 2, 2'); e('v_lshl_add_u32 v11, v3, 6, v11'); e('v_and_b32 v3, 3, v1'); e('v_lshl_add_u32 v11, v3, 3, v11')
e('v_add_u32 v12, 49152, v11'); e('v_add_u32 v13, 98304, v11')
ST=144
e('v_lshrrev_b32 v3, 4, v1'); e('v_bfe_u32 v10, v1, 2, 2'); e('v_cmp_eq_u32 vcc, v3, v10'); e('v_mov_b32 v3, %s'%ONES)
for r in range(4): e('v_cndmask_b32 v%d, 0, v3, vcc'%(176+r))
e('s_mov_b32 s82, 0xaaaaaaaa'); e('s_mov_b32 s83, s82'); e('s_mov_b32 s84, 0xcccccccc'); e('s_mov_b32 s85, s84')
for i in range(16):
    e('s_waitcnt vmcnt(%d)'%(PF-1))
    if i in (0,8): stamp(2)
    if i+PF<16: xld(i+PF)
    else: wdma(1,(i+PF-16)//3,(i+PF-16)%3)
    SA,QA=152+4*(i&1),160+8*(i&1)
    if opt['ms']: e('v_mfma_f32_16x16x32_bf16 %s, v[176:179], %s, %s'%(v(SA,4),v(RAW+4*i,4),v(SA,4) if i>1 else '0'))
    for r in range(4):
        u=16+8*i+2*r
        if opt['ms'] and r&1==0: e('v_mfma_f32_4x4x4_16b_bf16 %s, %s, %s, %s'%(v(QA+2*r,4),v(RAW+4*i+r,2),v(RAW+4*i+r,2),v(QA+2*r,4) if i>1 else '0'))
        e('v_lshlrev_b32 v%d, 16, v%d'%(u,RAW+4*i+r)); e('v_and_b32 v%d, 0xffff0000, v%d'%(u+1,RAW+4*i+r))
    for r in range(4):
        if opt['ms']: break
        u=v(16+8*i+2*r,2); s_=v(ST+2*(i&1),2); q_=v(ST+4+2*(i&1),2)
        if i<2 and r==0: e('v_pk_add_f32 %s, %s, 0'%(s_,u)); e('v_pk_mul_f32 %s, %s, %s'%(q_,u,u))
        else: e('v_pk_add_f32 %s, %s, %s'%(s_,s_,u)); e('v_pk_fma_f32 %s, %s, %s, %s'%(q_,u,u,q_))
stamp(2)
nq=[PF]
def wnext():
    if nq[0]<12: wdma(1,nq[0]//3,nq[0]%3); nq[0]+=1
if opt['ms']:
    e.nop(8)
    for k in range(2):
        QA=160+8*k
        e('v_pk_add_f32 %s, %s, %s'%(v(QA,2),v(QA,2),v(QA+4,2))); e('v_pk_add_f32 %s, %s, %s'%(v(QA+2,2),v(QA+2,2),v(QA+6,2)))
        e('v_cndmask_b32 v%d, v%d, v%d, s[82:83]'%(QA,QA,QA+1)); e('v_cndmask_b32 v%d, v%d, v%d, s[82:83]'%(QA+2,QA+2,QA+3))
        e('v_cndmask_b32 v%d, v%d, v%d, s[84:85]'%(ST+4+2*k,QA,QA+2))
    for k in range(2): e('v_mov_b32 v%d, v%d'%(ST+2*k,152+4*k))
    e.nop(2)
else:
    for k in range(4): e('v_add_f32 v%d, v%d, v%d'%(ST+2*k,ST+2*k,ST+2*k+1))
for dpp in ('quad_perm:[1,0,3,2]','quad_perm:[2,3,0,1]','row_half_mirror'):
    for k in range(4): e.raw('  v_add_f32_dpp v%d, v%d, v%d %s row_mask:0xf bank_mask:0xf'%(ST+2*k,ST+2*k,ST+2*k,dpp)); e.pos+=1
for k in range(2):
    m,q=ST+2*k,ST+4+2*k
    e('v_mul_f32 v%d, 0xbb000000, v%d'%(m,m)); e('v_mul_f32 v%d, 0x3b000000, v%d'%(q,q)); e('v_fma_f32 v%d, -v%d, v%d, v%d'%(q,m,m,q)); e('v_max_f32 v%d, 0, v%d'%(q,q)); e('v_add_f32 v%d, 0x3727c5ac, v%d'%(q,q))
    e('v_rsq_f32 v%d, v%d'%(q,q)); e('v_mul_f32 v%d, v%d, v%d'%(m,m,q)); e('v_mov_b32 v%d, v%d'%(q+1,q)); e('v_mov_b32 v%d, v%d'%(m+1,m))
def xwrite(i): e('ds_write_b128 v6, %s offset:%d'%(v(RAW+4*i,4),(i&1)*4096+(((i>>1)&3)^(i&1))*128))
def norm(i,ST):
    L=[]
    for r in range(4): u=v(16+8*i+2*r,2); L.append('v_pk_fma_f32 %s, %s, %s, %s'%(u,u,v(ST+4+2*(i&1),2),v(ST+2*(i&1),2)))
    for r in range(4): L.append('v_cvt_pk_bf16_f32 v%d, v%d, v%d'%(RAW+4*i+r,16+8*i+2*r,17+8*i+2*r))
    return L
for i in range(8):
    for t in norm(i,ST): e(t)
    xwrite(i)
    if i%opt['wsp']==0: wnext()
while nq[0]<opt['wpre']: wnext()
XA=204
e('v_mov_b32 v%d, v7'%XA)
for s in range(1,4): e('v_xor_b32 v%d, %d, v7'%(XA+s,64*s))
e('s_waitcnt lgkmcnt(0)')
for r in range(8): e('v_mov_b32 v%d, v%d'%(208+r,ST+r))
e('s_mul_i32 %s, s7, 0x85ebca6b'%T0); e('s_add_u32 %s, %s, s6'%(T0,T0)); e('s_add_u32 s7, %s, 0x1234567'%T0); e('s_mul_i32 s6, s6, 0x9e3779b1'); e('s_add_u32 s6, s6, 0x7f4a7c15')
stamp(2); e('s_waitcnt vmcnt(%d)'%(nq[0]-3)); e('s_barrier')
stamp(3)
def xread(s):
    for T in range(2): e('ds_read_b128 %s, v%d offset:%d'%(v(XF+8*s+4*T,4),XA+(s&3),256*((s>>2)&1)+8192*T))
def wread(reg,s,only=None):
    a=reg[s//4]+(s&3)*6144; b=VR0+a//49152; a%=49152
    for j in range(3):
        for jj in range(2):
            if only is None or only==2*j+jj: e('ds_read_b64_tr_b16 %s, v%d offset:%d'%(v(WF+(s%3)*12+4*j+2*jj,2),b,a+1024*j+256*jj))
def bar(n): e('s_waitcnt vmcnt(%d)'%n); e('s_barrier')
def flag(stage):
    e('s_mov_b64 exec, 1'); e('s_lshl_b32 %s, %s, 3'%(T0,SID)); e('s_add_u32 %s, %s, %d'%(T0,T0,FL+2048*stage)); e('v_mov_b32 v4, s6'); e('v_mov_b32 v5, s7'); e('v_mov_b32 v3, 0')
    e('buffer_store_dwordx2 v[4:5], v3, %s, %s offen sc1'%(WS,T0)); e('s_mov_b64 exec, -1')
PK=208
def pack(j):
    for T in range(2):
        for r in range(2): e('v_cvt_pk_bf16_f32 v%d, v%d, v%d'%(PK+4*j+2*T+r,A+8*j+4*T+2*r,A+8*j+4*T+2*r+1))
    for r in range(2): e('v_permlane32_swap_b32 v%d, v%d'%(PK+4*j+r,PK+4*j+2+r))
pfl=[(252,W2,k*16384,0) for k in (0,22,44,65)]+[(253,W2,k*16384,0) for k in (12,34,56,76)]+[(254,WO,0,1024*k) for k in range(2)]
def pfinit():
    e('s_lshr_b32 %s, s2, 3'%T0); e('s_lshl_b32 %s, %s, 3'%(T0,T0)); e('s_add_u32 %s, %s, %s'%(T0,T0,W)); e('v_bfrev_b32 v3, 2')
    for r,n in ((252,48),(253,40)):
        e('s_mul_i32 %s, %s, %d'%(T1,T0,16*n)); e('v_add_u32 v%d, %s, v14'%(r,T1)); e('v_cmp_gt_u32 vcc, %d, v1'%n); e('v_cndmask_b32 v%d, v3, v%d, vcc'%(r,r))
    e('s_lshl_b32 %s, %s, 11'%(T1,T0)); e('v_add_u32 v254, %s, v14'%T1)
def pf1():
    if pfl: r,b,so,o=pfl.pop(0); e('s_mov_b32 %s, %d'%(T3,so)); e('buffer_load_dwordx4 v[248:251], v%d, %s, %s offen offset:%d'%(r,b,T3,o))
def poll(name,voff,base,n=1):
    e('s_mov_b32 %s, 0'%SCNT); e('s_mov_b32 %s, %d'%(T3,base)); e.label('L_p'+name)
    for i in range(n): e('buffer_load_dwordx2 %s, v%d, %s, %s offen offset:%d sc1'%(v(244+2*i,2),voff,WS,T3,512*i))
    e('s_waitcnt vmcnt(0)')
    for i in range(n):
        e('v_cmp_ne_u64 vcc, s[6:7], %s'%v(244+2*i,2)); e.nop(4); e('s_cbranch_vccnz L_r'+name)
    e('s_branch L_q'+name); e.label('L_r'+name)
    e('s_sleep 4'); e('s_add_u32 %s, %s, 1'%(SCNT,SCNT)); e('s_cmp_lt_u32 %s, 0x40000'%SCNT); e('s_cbranch_scc1 L_p'+name); e.label('L_q'+name)
KF,QF,VF=16,52,56
KV=49152
def check(name,base,n):
    e('s_waitcnt vmcnt(%d)'%n); e('v_cmp_ne_u64 vcc, s[6:7], v[244:245]'); e.nop(4); e('s_cbranch_vccz L_q'+name); poll(name,6,base)
def p1():
    e('s_lshl_b32 %s, %s, 4'%(T0,RB)); e('s_sub_u32 %s, %s, 32'%(T0,T0)); e('v_min_u32 v6, 47, v1'); e('v_add_u32 v6, %s, v6'%T0); e('v_max_i32 v6, 0, v6'); e('v_lshlrev_b32 v6, 3, v6')
    e('s_mov_b32 %s, %d'%(T3,FL)); e('buffer_load_dwordx2 v[244:245], v6, %s, %s offen sc1'%(WS,T3))
def kvld():
    check('1',FL,0)
    e('s_lshl_b32 %s, %s, 21'%(T1,KH)); e('s_lshl_b32 %s, %s, 11'%(T0,CG)); e('s_add_u32 %s, %s, %s'%(T1,T1,T0)); e('s_add_u32 %s, %s, %d'%(T1,T1,KB))
    e('s_mul_i32 %s, %s, 24576'%(T2,KH)); e('s_lshl_b32 %s, %s, 11'%(T0,TG)); e('s_add_u32 %s, %s, %s'%(T2,T2,T0))
    for i in range(3):
        e('s_sub_i32 %s, %s, %d'%(T3,QBI,4*i)); e('s_max_i32 %s, %s, 0'%(T3,T3)); e('s_lshl_b32 %s, %s, 15'%(T3,T3)); e('s_add_u32 %s, %s, %s'%(T3,T3,T1))
        e('s_add_u32 m0, %s, %d'%(T2,KV+(2-i)*8192))
        for c in range(2): e('buffer_load_dwordx4 v14, %s, %s offen offset:%d sc1 lds'%(WS,T3,1024*c))
def qld():
    e('s_lshl_b32 %s, %s, 1'%(T1,CG)); e('s_add_u32 %s, %s, %s'%(T1,T1,KH)); e('s_lshl_b32 %s, %s, 10'%(T1,T1))
    e('s_lshl_b32 %s, %s, 15'%(T0,QBI)); e('s_add_u32 %s, %s, %s'%(T3,T0,T1)); e('buffer_load_dwordx4 %s, v14, %s, %s offen sc1'%(v(QF,4),WS,T3))
def sig(off,val,lbl):
    e('v_mov_b32 v3, %d'%(CNT+off)); e('v_mov_b32 v10, 1'); e('s_mov_b64 exec, 1'); e('ds_add_rtn_u32 v10, v3, v10'); e('s_waitcnt lgkmcnt(0)'); e('s_mov_b64 exec, -1')
    e('v_readfirstlane_b32 %s, v10'%T0); e('s_cmp_lg_u32 %s, 7'%T0); e('s_cbranch_scc1 L_'+lbl); flag(val); e.label('L_'+lbl)
REG=WQR+W1R
lq=[]
def xr(s): xread(s); lq.extend([('x',s)]*2)
def wr(s): wread(REG,s); lq.extend([('w',s)]*6)
def lwait(tags):
    idx=[i for i,t in enumerate(lq) if t in tags]
    if idx:
        n=len(lq)-1-max(idx); e('s_waitcnt lgkmcnt(%d)'%min(n,15)); del lq[:max(idx)+1]
xr(0); wr(0); xr(1); wr(1)
if opt['pr']: e('s_cmp_eq_u32 %s, 0'%KH); e('s_cbranch_scc1 L_pr'); e('s_setprio 1'); e.label('L_pr')
fill=[t for i in range(8,16) for t in norm(i,208)]
S,NM,MD,MF,O,P=80,128,144,204,160,224
fil2=['v_and_b32 v4, 31, v1','v_lshrrev_b32 v5, 5, v1','v_lshlrev_b32 v5, 2, v5','v_sub_u32 v4, v4, v5','v_mov_b32 v5, 0xf149f2ca']
for r in range(16): fil2+=['v_cmp_le_i32 vcc, %d, v4'%((r&3)+8*(r>>2)),'v_mov_b32 v%d, %s'%(VF+r,ONES),'v_cndmask_b32 v%d, v5, 0, vcc'%(MD+r),'v_cndmask_b32 v%d, 0, v5, vcc'%(MF+r)]
XS={0:[2,3,4],1:[5,6,7],6:[8,9],7:[10,11],8:[12],9:[13],10:[14],11:[15]}
for s in range(32):
    q=s<16; A=ACC if q else 220
    if s in (1,2,4,6,8,10,14): stamp(2)
    if s==2: lwait([('x',7)]); bar(nq[0]-6)
    if s==6: lwait([('s',15)]); bar(3); assert nq[0]==12
    if s==10: bar(3)
    if s==14: lwait([('x',15)]); bar(3); e('v_mov_b32 v3, %d'%CNT); e('v_mov_b32 v10, 0'); e('ds_write_b32 v3, v10'); e('ds_write_b32 v3, v10 offset:4'); e('ds_write_b32 v3, v10 offset:8'); lq.extend([0,0,0])
    if s==18: bar(7)
    if s==opt['fs']<22: e('s_waitcnt vmcnt(%d)'%(3 if s>19 else 2)); sig(8,0,'f1')
    if s==22: bar(3+10-len(pfl))
    if s==22==opt['fs']: e('s_cmp_lg_u32 %s, 0'%W); e('s_cbranch_scc1 L_f1'); flag(0); e.label('L_f1')
    if s==26: bar(10-len(pfl))
    lwait([('w',s),('x',s)])
    if s<30 and not opt['il']: wr(s+2)
    if s<6 and not opt['il']: wnext()
    dm={6:(0,0),7:(0,1),8:(0,2),10:(1,0),11:(1,1),12:(1,2),14:(2,0),15:(2,1),16:(2,2),18:(3,1),19:(3,2)}
    if s in dm and not opt['il']: wdma(0,*dm[s])
    if s==opt['pe']: pfinit()
    if s==opt['p1']: p1()
    if s==opt['p1']+2: kvld()
    xs=list(XS.get(s,[]))
    for j in range(3):
        for T in range(2):
            a,b=v(WF+(s%3)*12+4*j,4),v(XF+8*(s&15)+4*T,4)
            if q and j==2: a,b=b,a
            e('v_mfma_f32_16x16x32_bf16 %s, %s, %s, %s'%(v(A+8*j+4*T,4),a,b,v(A+8*j+4*T,4) if s&15 else '0'))
            if opt['il']:
                if s<30: wread(REG,s+2,2*j+T); lq.append(('w',s+2))
                if j==1 and T==0:
                    if s<6: wnext()
                    if s in dm: wdma(0,*dm[s])
                    if s>=opt['pe'] and len(pfl)>10-opt['pn']: pf1()
            if s<4:
                for k in range(3 if j*2+T<4 else 2): e(fill.pop(0))
            if s>=24:
                for k in range(2):
                    if fil2: e(fil2.pop(0))
            if T==0 and xs: xr(xs.pop(0))
            if 2<=s<6 and T==1 and j<2: i=8+2*(s-2)+j; xwrite(i); lq.append(('s',i))
    if s==16:
        A=ACC
        e('s_and_b32 %s, %s, 1'%(T0,CG)); e('s_cmp_eq_u32 %s, 0'%T0); e('s_cselect_b32 %s, 0x3eb8aa3b, 1.0'%T1)
        for r in range(16): e('v_mul_f32 v%d, %s, v%d'%(ACC+r,T1,ACC+r))
        e('s_lshl_b32 %s, %s, 21'%(T0,T0)); e('s_lshl_b32 %s, %s, 15'%(T1,QBI)); e('s_add_u32 %s, %s, %s'%(T0,T0,T1))
        e('s_lshr_b32 %s, %s, 1'%(T3,CG)); e('s_lshl_b32 %s, %s, 2'%(T3,T3)); e('s_add_u32 %s, %s, %s'%(T3,T3,KH)); e('s_lshl_b32 %s, %s, 10'%(T3,T3)); e('s_add_u32 %s, %s, %s'%(T0,T0,T3))
        e('s_lshl_b32 %s, %s, 1'%(T3,CG)); e('s_add_u32 %s, %s, %s'%(T3,T3,KH)); e('s_lshl_b32 %s, %s, 10'%(T3,T3)); e('s_add_u32 %s, %s, %s'%(T1,T1,T3)); e('s_add_u32 %s, %s, %d'%(T1,T1,VB))
        for j in range(3):
            pack(j)
            if j<2: e('buffer_store_dwordx4 %s, v15, %s, %s offen offset:%d sc1'%(v(PK+4*j,4),WS,T0,2048*j))
            else: e('buffer_store_dwordx4 %s, v14, %s, %s offen sc1'%(v(PK+4*j,4),WS,T1))
        wdma(0,3,0)
    if s==15: stamp(3)
stamp(3)
if opt['p1']>=30: kvld()
qld()
A=220; EX=180; PK=168
e('s_mul_i32 %s, %s, 86'%(T0,QBI)); e('s_lshr_b32 %s, %s, 5'%(T1,W1A)); e('s_add_u32 %s, %s, %s'%(T0,T0,T1)); e('s_add_u32 %s, %s, %s'%(T0,T0,KH)); e('s_lshl_b32 %s, %s, 10'%(T0,T0)); e('s_add_u32 %s, %s, %d'%(T0,T0,HB))
e('s_mov_b32 s4, 0xbfb8aa3b'); e('s_mov_b32 s5, 0xbfb8aa3b')
for j in range(3):
    for r in range(0,8,2): e('v_pk_mul_f32 %s, %s, s[4:5]'%(v(EX+r,2),v(A+8*j+r,2)))
    for r in range(8): e('v_exp_f32 v%d, v%d'%(EX+r,EX+r))
    for r in range(0,8,2): e('v_pk_add_f32 %s, %s, 1.0 op_sel_hi:[1,0]'%(v(EX+r,2),v(EX+r,2)))
    for r in range(8): e('v_rcp_f32 v%d, v%d'%(EX+r,EX+r))
    for r in range(0,8,2): e('v_pk_mul_f32 %s, %s, %s'%(v(A+8*j+r,2),v(A+8*j+r,2),v(EX+r,2)))
    pack(j)
    if j==2: e('s_add_u32 %s, %s, 4096'%(T0,T0))
    e('buffer_store_dwordx4 %s, v15, %s, %s offen offset:%d sc1'%(v(PK+4*j,4),WS,T0,2048*(j&1)))
stamp()
e('v_lshrrev_b32 v3, 2, v1'); e('v_and_b32 v10, 3, v1'); e('v_lshlrev_b32 v10, 4, v10'); e('v_lshl_add_u32 v8, v3, 10, v10')
e('s_mul_i32 %s, %s, 22'%(T5,KQ)); e('s_cmp_eq_u32 %s, 3'%KQ); e('s_subb_u32 %s, %s, 0'%(T5,T5))
e('s_add_u32 %s, %s, %s'%(T2,T5,TG2)); e('s_lshl_b32 %s, %s, 14'%(T2,T2)); e('s_lshl_b32 %s, %s, 7'%(T0,CB)); e('s_add_u32 %s, %s, %s'%(T2,T2,T0))
e('s_lshl_b32 %s, %s, 11'%(T4,KQ)); e('s_lshl_b32 %s, %s, 13'%(T0,TG2)); e('s_add_u32 %s, %s, %s'%(T4,T4,T0))
def slot(u): return ((u+12)%18)*8192
def w3dma(u):
    if u==22:
        e('s_lshl_b32 %s, %s, 3'%(T2,KQ)); e('s_add_u32 %s, %s, %s'%(T2,T2,TG2)); e('s_lshl_b32 %s, %s, 14'%(T2,T2)); e('s_lshl_b32 %s, %s, 7'%(T0,CB)); e('s_add_u32 %s, %s, %s'%(T2,T2,T0))
    for j in range(2):
        e('s_add_u32 m0, %s, %d'%(T4,slot(u)+960*j)); e('buffer_load_dwordx4 v8, %s, %s offen offset:%d lds'%(W2 if u<22 else WO,T2,64*j))
    e('s_add_u32 %s, %s, 32768'%(T2,T2))
def smf(d,c): e('v_mfma_f32_32x32x16_bf16 %s, %s, %s, %s'%(v(S+16*(d%3),16),v(KF+4*d,4),v(QF,4),c))
e('s_lshl_b32 %s, %s, 1'%(T0,TG)); e('s_add_u32 %s, %s, %s'%(T0,T0,KH)); e('s_lshl_b32 %s, %s, 10'%(T0,T0)); e('s_add_u32 %s, %s, %d'%(T0,T0,KV)); e('v_add_u32 v7, %s, v14'%T0)
e('v_lshrrev_b32 v3, 5, v1'); e('v_and_b32 v10, 15, v1'); e('v_lshlrev_b32 v10, 4, v10'); e('v_lshl_add_u32 v10, v3, 8, v10'); e('s_add_u32 %s, %s, 24576'%(T0,T0)); e('v_add_u32 v9, %s, v10'%T0)
bar(3); stamp()
for d in range(9): e('ds_read_b128 %s, v7 offset:%d'%(v(KF+4*d,4),(8-d)*2048))
def vread(d):
    e('s_mov_b32 exec_lo, 0xffff'); e('s_mov_b32 exec_hi, 0xffff')
    for c in range(2): e('ds_read_b128 %s, v9 offset:%d'%(v(VF+8*(d&1)+4*c,4),(8-d)*2048+512*c))
    e('s_mov_b64 exec, -1')
n3=min(len(pfl),opt['pfp'])
for k in range(n3): pf1()
for u in range(0,2*opt['w0'],2): w3dma(u)
e('s_waitcnt lgkmcnt(0)')
c1=lambda d: v(MD,16) if d==0 else v(MF,16) if d==8 else '0'
smf(0,c1(0)); smf(1,c1(1))
for d in range(9):
    if d+2<9: smf(d+2,c1(d+2))
    b=S+16*(d%3)
    if d==0: e('v_max_f32 v4, v%d, v%d'%(b,b+1)); e('v_max_f32 v5, v%d, v%d'%(b+2,b+3))
    else: e('v_max3_f32 v4, v%d, v%d, v4'%(b,b+1)); e('v_max3_f32 v5, v%d, v%d, v5'%(b+2,b+3))
    for r in range(4,16,2): e('v_max3_f32 v%d, v%d, v%d, v%d'%(4+((r>>1)&1),b+r,b+r+1,4+((r>>1)&1)))
    if d<8: e('s_cmp_eq_u32 %s, %d'%(QBI,d)); e('s_cbranch_scc1 L_a1')
e.label('L_a1')
e('v_max_f32 v4, v4, v5'); e('v_mov_b32 v5, v4'); e('v_permlane32_swap_b32 v4, v5'); e('v_max_f32 v4, v4, v5')
e.nop(8)
for r in range(16): e('v_sub_f32 v%d, v%d, v4'%(MD+r,MD+r))
for r in range(16): e('v_sub_f32 v%d, 0, v4'%(NM+r))
for r in range(16): e('v_sub_f32 v%d, v%d, v4'%(MF+r,MF+r))
e('s_waitcnt vmcnt(%d)'%(2*opt['w0']+n3))
sig(0,1,'f2')
e('s_lshr_b32 %s, %s, 1'%(T0,RB2)); e('s_lshl_b32 %s, %s, 7'%(T0,T0)); e('v_and_b32 v6, 15, v1'); e('v_lshlrev_b32 v6, 3, v6'); e('v_add_u32 v6, %s, v6'%T0)
e('s_mov_b32 %s, %d'%(T1,FL+2048))
vread(0)
c2=lambda d: v(MD,16) if d==0 else v(MF,16) if d==8 else v(NM,16)
smf(0,c2(0))
for d in range(9):
    if d<8:
        e('s_cmp_lg_u32 %s, %d'%(QBI,d)); e('s_cbranch_scc1 L_m%d'%d)
        for r in range(16): e('v_mov_b32 v%d, 0xf149f2ca'%(NM+r)); e('v_mov_b32 v%d, 0xf149f2ca'%(MF+r))
        e.label('L_m%d'%d)
        smf(d+1,c2(d+1)); vread(d+1)
    if d+opt['w0']<6: w3dma(2*(d+opt['w0']))
    pf1()
    if d==8: e('buffer_load_dwordx2 v[244:245], v6, %s, %s offen sc1'%(WS,T1))
    b=S+16*(d%3); p=P+8*(d&1)
    for c in range(2):
        for r in range(8): e('v_exp_f32 v%d, v%d'%(b+8*c+r,b+8*c+r))
        for r in range(4): e('v_cvt_pk_bf16_f32 v%d, v%d, v%d'%(p+4*c+r,b+8*c+2*r,b+8*c+2*r+1))
    e('s_waitcnt lgkmcnt(%d)'%(2 if d<8 else 0))
    for c in range(2): e('v_mfma_f32_32x32x16_bf16 %s, %s, %s, %s'%(v(O,16),v(VF+8*(d&1)+4*c,4),v(p+4*c,4),v(O,16) if d+c else '0'))

e('v_rcp_f32 v4, v%d'%(O+8))
for r in range(8): e('v_mul_f32 v%d, v%d, v4'%(O+r,O+r))
for r in range(4): e('v_cvt_pk_bf16_f32 v%d, v%d, v%d'%(192+r,O+2*r,O+2*r+1))
stamp()
e('s_lshl_b32 %s, %s, 5'%(T0,QBI)); e('s_lshl_b32 %s, %s, 1'%(T1,CG)); e('s_add_u32 %s, %s, %s'%(T0,T0,T1)); e('s_add_u32 %s, %s, %s'%(T0,T0,KH)); e('s_lshl_b32 %s, %s, 10'%(T0,T0)); e('s_add_u32 %s, %s, %d'%(T0,T0,OB))
e('buffer_store_dwordx4 %s, v14, %s, %s offen sc1'%(v(192,4),WS,T0))
HF,A3,W3,XR=16,136,168,204
HS,OS=WQA,WQB
e('s_lshl_b32 %s, %s, 1'%(T1,RB2)); e('s_add_u32 %s, %s, %s'%(T1,T1,TG2))
e('s_mul_i32 %s, %s, 86'%(HS,T1)); e('s_add_u32 %s, %s, %s'%(HS,HS,T5)); e('s_lshl_b32 %s, %s, 10'%(HS,HS)); e('s_add_u32 %s, %s, %d'%(HS,HS,HB))
e('s_lshl_b32 %s, %s, 5'%(OS,T1)); e('s_lshl_b32 %s, %s, 3'%(T3,KQ)); e('s_add_u32 %s, %s, %s'%(OS,OS,T3)); e('s_lshl_b32 %s, %s, 10'%(OS,OS)); e('s_add_u32 %s, %s, %d'%(OS,OS,OB))
if opt['fin']==0: e('v_lshrrev_b32 v3, 3, v0'); e('v_and_b32 v10, 7, v0'); e('v_lshlrev_b32 v10, 4, v10'); e('v_lshl_add_u32 v9, v3, 10, v10')
else: e('v_and_b32 v3, 31, v1'); e('v_lshrrev_b32 v10, 5, v1'); e('v_lshlrev_b32 v10, 4, v10'); e('v_lshl_add_u32 v9, v3, 10, v10'); e('s_lshl_b32 %s, %s, 15'%(T0,TG2)); e('s_lshl_b32 %s, %s, 5'%(T3,KQ)); e('s_add_u32 %s, %s, %s'%(T0,T0,T3)); e('v_add_u32 v9, %s, v9'%T0)
e('v_lshrrev_b32 v10, 5, v1'); e('v_bfe_u32 v3, v1, 2, 2'); e('v_lshl_add_u32 v3, v10, 2, v3'); e('v_lshlrev_b32 v3, 6, v3')
e('v_and_b32 v11, 16, v1'); e('v_lshl_add_u32 v3, v11, 1, v3'); e('v_and_b32 v11, 3, v1'); e('v_lshl_add_u32 v3, v11, 3, v3')
e('s_lshl_b32 %s, %s, 11'%(T0,KQ)); e('v_add_u32 v11, %s, v3'%T0); e('v_add_u32 v12, 49152, v11'); e('v_add_u32 v13, 98304, v11')
check('2',FL+2048,1); stamp()
vq=['o']
def vw(tags,extra=''):
    idx=[i for i,t in enumerate(vq) if t in tags]
    if idx: n=len(vq)-1-max(idx); del vq[:max(idx)+1]; e('s_waitcnt vmcnt(%d) %s'%(n,extra))
    elif extra: e('s_waitcnt '+extra)
def ald(u):
    k=u if u<22 else u-22; r=HS if u<22 else OS
    e('buffer_load_dwordx4 %s, v14, %s, %s offen offset:%d sc1'%(v(HF+4*u,4),WS,r,1024*(k&3))); vq.append(('a',u))
    if k&3==3: e('s_add_u32 %s, %s, 4096'%(r,r))
def w3d(u): w3dma(u); vq.extend([('w',u)]*2)
LA=opt['la']
for u in range(LA): ald(u)
e('s_barrier'); stamp()
def w3read(u):
    a=slot(u); b=VR0+a//49152; a%=49152
    for j in range(2):
        for jj in range(2): e('ds_read_b64_tr_b16 %s, v%d offset:%d'%(v(W3+(u%3)*8+4*j+2*jj,2),b,a+1024*j+512*jj))
w3read(0); w3read(1)
WD={1:12,3:14,5:16,6:18,8:20,10:22,16:24,17:26,18:28}
na=[LA]; PU=opt['pu']
for u in range(30):
    if u==6: e('s_barrier')
    if u==10: vw([('w',16)]); e('s_barrier')
    if u==16: vw([('w',22)]); e('s_barrier'); stamp()
    if u==22: vw([('w',28)]); e('s_barrier'); stamp()
    if u==26 and opt['fin']: e('s_barrier')
    if u==29:
        vw(['x'])
        if opt['fin']:
            for r in range(2): e('v_permlane32_swap_b32 v%d, v%d'%(XR+r,XR+2+r))
    if u==PU-2: e('s_mov_b32 %s, %d'%(T1,FL+4096)); e('buffer_load_dwordx2 v[244:245], v6, %s, %s offen sc1'%(WS,T1)); vq.append('p')
    if u==PU: n=len(vq)-1-vq.index('p'); del vq[:vq.index('p')+1]; check('3',FL+4096,n)
    if u+2<30: w3read(u+2)
    if u in WD: w3d(WD[u])
    for k in range(2 if u>=PU else 1):
        if na[0]<(30 if u>=PU else 22): ald(na[0]); na[0]+=1
    if u==20:
        e('s_lshl_b32 %s, %s, 16'%(T3,RB2)); e('s_lshl_b32 %s, %s, 7'%(T0,CB)); e('s_add_u32 %s, %s, %s'%(T3,T3,T0))
        e('buffer_load_dwordx4 %s, v9, %s, %s offen'%(v(XR,4),X,T3)); vq.append('x')
    lg=8 if u+2<30 else 4 if u+1<30 else 0
    vw([('a',u)],'lgkmcnt(%d)'%lg)
    if u==21: e('s_cmp_ge_u32 %s, 2'%KQ); e('s_cbranch_scc1 L_s21')
    for j in range(2): e('v_mfma_f32_32x32x16_bf16 %s, %s, %s, %s'%(v(A3+16*j,16),v(W3+(u%3)*8+4*j,4),v(HF+4*u,4),v(A3+16*j,16) if u else '0'))
    if u==21: e.label('L_s21')
    if u==0: sig(4,2,'f3')
    if u==2:
        e('s_or_b32 %s, %s, %s'%(T0,SID,W)); e('s_cmp_lg_u32 %s, 0'%T0); e('s_cbranch_scc1 L_noep')
        e('v_lshlrev_b32 v7, 3, v1'); poll('e',7,FL,4)
        e('v_mov_b32 v4, s6'); e('v_mov_b32 v5, s7'); e('v_mov_b32 v3, 0'); e('s_mov_b32 %s, %d'%(T0,EP)); e('s_mov_b64 exec, 1'); e('buffer_store_dwordx2 v[4:5], v3, %s, %s offen sc1'%(WS,T0)); e('s_mov_b64 exec, -1')
        e.label('L_noep')
stamp()
if opt['fin']==0:
    e('s_barrier')
    e('s_mul_i32 %s, %s, 17408'%(T0,KQ)); e('s_mul_i32 %s, %s, 8704'%(T3,TG2)); e('s_add_u32 %s, %s, %s'%(T0,T0,T3))
    e('v_and_b32 v3, 31, v1'); e('v_mul_u32_u24 v3, 272, v3'); e('v_lshrrev_b32 v10, 5, v1'); e('v_lshl_add_u32 v3, v10, 4, v3'); e('v_add_u32 v3, %s, v3'%T0)
    for j in range(2):
        for q in range(4): e('ds_write_b128 v3, %s offset:%d'%(v(A3+16*j+4*q,4),128*j+32*q))
    e('v_lshrrev_b32 v3, 3, v0'); e('v_mul_u32_u24 v3, 272, v3'); e('v_and_b32 v10, 7, v0'); e('v_lshl_add_u32 v3, v10, 5, v3')
    for r in range(4): e('v_lshlrev_b32 v%d, 16, v%d'%(64+2*r,XR+r)); e('v_and_b32 v%d, 0xffff0000, v%d'%(65+2*r,XR+r))
    e('s_waitcnt lgkmcnt(0)'); e('s_barrier')
    for k in range(4):
        for i in range(2): e('ds_read_b128 %s, v3 offset:%d'%(v(16+8*k+4*i,4),17408*k+16*i))
    for k in range(4):
        e('s_waitcnt lgkmcnt(%d)'%(6-2*k))
        for r in range(8): e('v_add_f32 v%d, v%d, v%d'%(64+r,64+r,16+8*k+r))
    for r in range(4): e('v_cvt_pk_bf16_f32 v%d, v%d, v%d'%(72+r,64+2*r,65+2*r))
    e('s_lshl_b32 %s, %s, 16'%(T3,RB2)); e('s_lshl_b32 %s, %s, 7'%(T0,CB)); e('s_add_u32 %s, %s, %s'%(T3,T3,T0))
    e('buffer_store_dwordx4 v[72:75], v9, %s, %s offen'%(OUT,T3))
else:
    FB=98304
    e('s_lshl_b32 %s, %s, 11'%(T0,W)); e('s_add_u32 %s, %s, %d'%(T0,T0,FB)); e('v_add_u32 v3, %s, v14'%T0); e.nop(16)
    for k in range(4):
        e('s_cmp_eq_u32 %s, %d'%(KQ,k)); e('s_cbranch_scc1 L_o%d'%k)
        for i in range(2): e('ds_write_b128 v3, %s offset:%d'%(v(A3+8*k+4*i,4),16384*k+1024*i))
        e('s_branch L_n%d'%k); e.label('L_o%d'%k)
        for r in range(4):
            e('v_lshlrev_b32 v%d, 16, v%d'%(64+2*r,XR+r)); e('v_and_b32 v%d, 0xffff0000, v%d'%(65+2*r,XR+r))
            e('v_pk_add_f32 %s, %s, %s'%(v(64+2*r,2),v(64+2*r,2),v(A3+8*k+2*r,2)))
        e.label('L_n%d'%k)
    e('s_lshl_b32 %s, %s, 14'%(T0,KQ)); e('s_add_u32 %s, %s, %d'%(T0,T0,FB))
    for k in range(1,4):
        e('s_add_u32 %s, %s, %d'%(T1,W,2*k)); e('s_and_b32 %s, %s, 7'%(T1,T1)); e('s_lshl_b32 %s, %s, 11'%(T1,T1)); e('s_add_u32 %s, %s, %s'%(T1,T1,T0)); e('v_add_u32 v%d, %s, v14'%(3+k,T1))
    e('s_waitcnt lgkmcnt(0)'); e('s_barrier')
    for k in range(1,4):
        for i in range(2): e('ds_read_b128 %s, v%d offset:%d'%(v(16+8*k+4*i,4),3+k,1024*i))
    for k in range(1,4):
        e('s_waitcnt lgkmcnt(%d)'%(6-2*k))
        for r in range(4): e('v_pk_add_f32 %s, %s, %s'%(v(64+2*r,2),v(64+2*r,2),v(16+8*k+2*r,2)))
    for r in range(4): e('v_cvt_pk_bf16_f32 v%d, v%d, v%d'%(72+r,64+2*r,65+2*r))
    for r in range(2): e('v_permlane32_swap_b32 v%d, v%d'%(72+r,74+r))
    e('s_lshl_b32 %s, %s, 16'%(T3,RB2)); e('s_lshl_b32 %s, %s, 7'%(T0,CB)); e('s_add_u32 %s, %s, %s'%(T3,T3,T0))
    e('buffer_store_dwordx4 v[72:75], v9, %s, %s offen %s'%(OUT,T3,['','sc1','nt','sc0 sc1'][opt['ost']]))
if opt['stamp']:
    stamp(3); e('s_memrealtime s[62:63]'); e('s_waitcnt lgkmcnt(0)')
    e('s_lshl_b32 %s, s2, 3'%T0); e('s_add_u32 %s, %s, %s'%(T0,T0,W)); e('s_lshl_b32 %s, %s, 7'%(T0,T0)); e('s_add_u32 %s, %s, %d'%(T0,T0,15<<20))
    e('v_mov_b32 v3, 0'); e('s_mov_b64 exec, 1')
    for i in range(nst[0]+2):
        e('v_mov_b32 v10, s%d'%(60+2*i)); e('buffer_store_dword v10, v3, %s, %s offen offset:%d'%(WS,T0,4*i))
e.label('L_end'); e('s_endpgm')
hdr=open('cdna_kernels/%s.s.ref'%NAME).read().split('; Override')[0]
txt=hdr+'''; @launch grid=(256,1,1) block=(512,1,1) lds=163840
.amdgcn_target "amdgcn-amd-amdhsa--gfx950"
.text
.globl %s_kernel
.p2align 8
.type %s_kernel,@function
%s_kernel:
'''%(NAME,NAME,NAME)+e.text()+'''.section .rodata,"a"
.p2align 6
.amdhsa_kernel %s_kernel
  .amdhsa_next_free_vgpr 256
  .amdhsa_next_free_sgpr 102
  .amdhsa_accum_offset 256
  .amdhsa_group_segment_fixed_size 0
  .amdhsa_kernarg_size 72
  .amdhsa_user_sgpr_count 2
  .amdhsa_user_sgpr_kernarg_segment_ptr 1
  .amdhsa_system_sgpr_workgroup_id_x 1
.end_amdhsa_kernel
'''%NAME
open(sys.argv[1],'w').write(txt)
```

```python
import sys
from emit import E
NAME='parallel_sum__sliding_block__dense_activation_silu__prompt'
opt=dict(stamp=0,map=1,rot=1,pf=4,wsp=16,il=1,pr=1,fs=20,wpre=6,w0=0,la=6,pu=19,pfp=0,pe=21,pn=7,cp=1,p1=30,fin=1,ms=1,ost=0)
for a in sys.argv[2:]:
    k,v=a.split('='); opt[k]=int(v)
e=E()
QB,KB,VB,OB,HB=0,2<<20,4<<20,6<<20,8<<20
X,WQ,WO,W1,W2,OUT,DBG,WS=['s[%d:%d]'%(8+4*i,11+4*i) for i in range(8)]
RB,CG,W,TG,KH,ONES,QBI,T0,T1,T2,T3,RB2,CB,KQ,TG2,SID,T4,T5,SCNT,ROT,TGS,WQA,WQB,W1A='s40 s41 s42 s43 s44 s45 s46 s47 s48 s49 s50 s51 s52 s53 s54 s55 s56 s57 s58 s59 s3 s98 s99 s100'.split()
EP=14<<20; FL=EP+4096
def v(a,n=1): return 'v%d'%a if n==1 else 'v[%d:%d]'%(a,a+n-1)
nst=[0]
def stamp(l=1):
    if opt['stamp']&l and nst[0]<16:
        i=nst[0]; nst[0]+=1
        e('s_memtime s[%d:%d]'%(64+2*i,65+2*i)); e('s_waitcnt lgkmcnt(0)')
VWQ,VW1,VR0=8,9,11
XF,ACC,WF,RAW=16,144,168,192
CNT=160768; XR=98304
e('s_cmp_ge_u32 s2, 256'); e('s_cbranch_scc1 L_end')
if opt['stamp']: e('s_memrealtime s[60:61]'); e('s_memtime s[96:97]'); e('s_waitcnt lgkmcnt(0)'); e('s_mov_b32 s101, s96')
e('s_load_dwordx16 s[64:79], s[0:1], 0'); e('s_load_dwordx2 s[80:81], s[0:1], 64')
e('v_lshrrev_b32 v3, 6, v0'); e('v_and_b32 v1, 63, v0'); e('v_readfirstlane_b32 %s, v3'%W)
e('s_and_b32 %s, s2, 7'%T0); e('s_lshr_b32 %s, s2, 3'%T1)
if opt['cp']:
    e('s_getpc_b64 s[4:5]'); e.label('L_pc')
    e('v_lshl_add_u32 v4, %s, 3, v3'%T1); e('v_min_u32 v4, (L_end-L_pc)>>7, v4'); e('v_lshlrev_b32 v4, 7, v4'); e('v_mov_b32 v5, s5')
    e('v_add_co_u32 v4, vcc, s4, v4'); e('v_addc_co_u32 v5, vcc, 0, v5, vcc'); e('global_load_dword v2, v[4:5], off'); e.nop(2)
if opt['map']==0:
    e('s_lshr_b32 %s, %s, 4'%(RB,T1)); e('s_lshl_b32 %s, %s, 1'%(T2,T0)); e('s_add_u32 %s, %s, %s'%(RB,RB,T2)); e('s_and_b32 %s, %s, 15'%(CG,T1))
else:
    e('s_lshr_b32 %s, %s, 3'%(RB,T1)); e('s_lshr_b32 %s, %s, 1'%(T2,T0)); e('s_lshl_b32 %s, %s, 2'%(T2,T2)); e('s_add_u32 %s, %s, %s'%(RB,RB,T2))
    e('s_and_b32 %s, %s, 7'%(CG,T1)); e('s_and_b32 %s, %s, 1'%(T2,T0)); e('s_lshl_b32 %s, %s, 3'%(T2,T2)); e('s_add_u32 %s, %s, %s'%(CG,CG,T2))
e('s_lshr_b32 %s, %s, 3'%(RB2,T1)); e('s_lshl_b32 %s, %s, 2'%(T2,T0)); e('s_add_u32 %s, %s, %s'%(RB2,RB2,T2)); e('s_and_b32 %s, %s, 7'%(CB,T1))
e('s_lshl_b32 %s, %s, 4'%(SID,RB)); e('s_add_u32 %s, %s, %s'%(SID,SID,CG))
e('s_and_b32 %s, %s, 3'%(TG,W)); e('s_lshr_b32 %s, %s, 2'%(KH,W)); e('s_and_b32 %s, %s, 1'%(TG2,W)); e('s_lshr_b32 %s, %s, 1'%(KQ,W))
e('s_lshl_b32 %s, %s, 2'%(QBI,RB)); e('s_add_u32 %s, %s, %s'%(QBI,QBI,TG)); e('s_mov_b32 %s, 0x3f803f80'%ONES)
if opt['rot']: e('s_lshl_b32 %s, %s, 1'%(ROT,RB)); e('s_add_u32 %s, %s, %s'%(ROT,ROT,CG)); e('s_and_b32 %s, %s, 7'%(ROT,ROT))
else: e('s_mov_b32 %s, 0'%ROT)
e('v_lshrrev_b32 v3, 3, v1'); e('v_and_b32 v10, 7, v1'); e('v_lshlrev_b32 v4, 4, v10'); e('v_lshl_add_u32 v4, v3, 10, v4'); e('v_add_u32 v5, 8192, v4')
e('s_lshl_b32 %s, %s, 17'%(T0,RB)); e('s_lshl_b32 %s, %s, 14'%(T1,W)); e('s_add_u32 %s, %s, %s'%(T0,T0,T1))
e('s_waitcnt lgkmcnt(0)')
sz=[2097152,1572864,524288,1409024,1409024,2097152,256,16<<20]
src=[64,66,68,72,74,76,78,80]
def srd(i):
    b=8+4*i
    e('s_mov_b32 s%d, s%d'%(b,src[i])); e('s_mov_b32 s%d, s%d'%(b+1,src[i]+1)); e('s_mov_b32 s%d, %d'%(b+2,sz[i])); e('s_mov_b32 s%d, 0x20000'%(b+3))
srd(0)
PF=opt['pf']
e('s_mov_b32 %s, %s'%(T5,T0)); e('s_mov_b32 %s, %s'%(SCNT,ROT))
def xld(i):
    sg,rg=i>>1,i&1
    if rg==0: e('s_add_u32 %s, %s, %d'%(TGS,SCNT,sg)); e('s_and_b32 %s, %s, 7'%(TGS,TGS)); e('s_lshl_b32 %s, %s, 7'%(TGS,TGS)); e('s_add_u32 %s, %s, %s'%(TGS,TGS,T5))
    e('buffer_load_dwordx4 %s, v%d, %s, %s offen'%(v(RAW+4*i,4),4+rg,X,TGS))
for i in range(PF): xld(i)
e('s_add_u32 s4, s80, %d'%EP); e('s_addc_u32 s5, s81, 0'); e('s_load_dwordx2 s[6:7], s[4:5], 0')
for i in range(1,8): srd(i)
if opt['stamp']: e('s_mov_b32 s64, s101'); nst[0]=1
e('v_xor_b32 v10, v10, v3'); e('v_lshlrev_b32 v10, 4, v10'); e('v_lshl_add_u32 v6, v3, 9, v10'); e('s_lshl_b32 %s, %s, 13'%(T1,W)); e('s_add_u32 %s, %s, %d'%(T1,T1,XR)); e('v_add_u32 v6, %s, v6'%T1)
e('v_lshrrev_b32 v3, 2, v1'); e('v_lshrrev_b32 v10, 5, v1'); e('v_lshlrev_b32 v10, 1, v10'); e('v_xor_b32 v10, v10, v1'); e('v_and_b32 v10, 3, v10'); e('v_lshlrev_b32 v10, 4, v10')
e('v_mul_u32_u24 v8, 3072, v3'); e('v_add_u32 v8, v8, v10'); e('v_mul_u32_u24 v9, 2752, v3'); e('v_add_u32 v9, v9, v10')
e('v_lshlrev_b32 v14, 4, v1')
e('s_mul_i32 %s, %s, 3072'%(T4,W))
e('s_lshl_b32 %s, %s, 6'%(WQB,CG)); e('s_add_u32 %s, %s, 2048'%(WQB,WQB))
e('s_and_b32 %s, %s, 1'%(WQA,CG)); e('s_lshl_b32 %s, %s, 10'%(WQA,WQA)); e('s_lshr_b32 %s, %s, 1'%(T0,CG)); e('s_lshl_b32 %s, %s, 7'%(T0,T0)); e('s_add_u32 %s, %s, %s'%(WQA,WQA,T0))
e('s_mul_i32 %s, %s, 3'%(W1A,CG)); e('s_min_u32 %s, %s, 40'%(W1A,W1A)); e('s_lshl_b32 %s, %s, 6'%(W1A,W1A))
e('s_add_u32 %s, %s, %s'%(ROT,ROT,KH))
WQR=[0,24576,49152,73728]; W1R=[0,24576,98304,98304+24576]
def wdma(q,c,j):
    if j==0:
        e('s_add_u32 %s, %s, %d'%(T2,ROT,2*c)); e('s_and_b32 %s, %s, 7'%(T2,T2)); e('s_lshl_b32 %s, %s, 2'%(T2,T2)); e('s_add_u32 %s, %s, %s'%(T2,T2,TG))
        if q: e('s_mul_i32 %s, %s, 49152'%(T2,T2)); e('s_add_u32 %s, %s, %s'%(T3,T2,WQB)); e('s_add_u32 %s, %s, %s'%(T2,T2,WQA))
        else: e('s_mul_i32 %s, %s, 44032'%(T2,T2)); e('s_add_u32 %s, %s, %s'%(T2,T2,W1A))
    if q and j==2: e('s_add_u32 m0, %s, %d'%(T4,WQR[c]+2048)); e('buffer_load_dwordx4 v%d, %s, %s offen lds'%(VWQ,WQ,T3))
    elif q: e('s_add_u32 m0, %s, %d'%(T4,WQR[c]+960*j)); e('buffer_load_dwordx4 v%d, %s, %s offen offset:%d lds'%(VWQ,WQ,T2,64*j))
    else: e('s_add_u32 m0, %s, %d'%(T4,W1R[c]+960*j)); e('buffer_load_dwordx4 v%d, %s, %s offen offset:%d lds'%(VW1,W1,T2,64*j))
XA=160
e('v_and_b32 v3, 15, v1'); e('v_lshrrev_b32 v10, 4, v1'); e('v_xor_b32 v11, v10, v3'); e('v_lshlrev_b32 v11, 4, v11'); e('v_lshl_add_u32 v11, v3, 9, v11')
e('s_lshl_b32 %s, %s, 14'%(T1,TG)); e('s_add_u32 %s, %s, %d'%(T1,T1,XR)); e('v_add_u32 v7, %s, v11'%T1)
e('v_lshrrev_b32 v11, 5, v1'); e('v_lshl_add_u32 v15, v11, 4, v3'); e('v_and_b32 v12, 1, v10'); e('v_lshl_add_u32 v15, v12, 5, v15'); e('v_lshlrev_b32 v15, 4, v15')
e('v_mul_u32_u24 v11, 3072, v11'); e('v_lshl_add_u32 v11, v12, 9, v11'); e('v_xor_b32 v12, %s, v12'%KH); e('v_lshl_add_u32 v11, v12, 5, v11')
e('v_bfe_u32 v3, v1, 2, 2'); e('v_lshl_add_u32 v11, v3, 6, v11'); e('v_and_b32 v3, 3, v1'); e('v_lshl_add_u32 v11, v3, 3, v11')
e('v_add_u32 v12, 49152, v11'); e('v_add_u32 v13, 98304, v11')
ST=144
e('v_lshrrev_b32 v3, 4, v1'); e('v_bfe_u32 v10, v1, 2, 2'); e('v_cmp_eq_u32 vcc, v3, v10'); e('v_mov_b32 v3, %s'%ONES)
for r in range(4): e('v_cndmask_b32 v%d, 0, v3, vcc'%(176+r))
e('s_mov_b32 s82, 0xaaaaaaaa'); e('s_mov_b32 s83, s82'); e('s_mov_b32 s84, 0xcccccccc'); e('s_mov_b32 s85, s84')
for i in range(16):
    e('s_waitcnt vmcnt(%d)'%(PF-1))
    if i in (0,8): stamp(2)
    if i+PF<16: xld(i+PF)
    else: wdma(1,(i+PF-16)//3,(i+PF-16)%3)
    SA,QA=152+4*(i&1),160+8*(i&1)
    if opt['ms']: e('v_mfma_f32_16x16x32_bf16 %s, v[176:179], %s, %s'%(v(SA,4),v(RAW+4*i,4),v(SA,4) if i>1 else '0'))
    for r in range(4):
        u=16+8*i+2*r
        if opt['ms'] and r&1==0: e('v_mfma_f32_4x4x4_16b_bf16 %s, %s, %s, %s'%(v(QA+2*r,4),v(RAW+4*i+r,2),v(RAW+4*i+r,2),v(QA+2*r,4) if i>1 else '0'))
        e('v_lshlrev_b32 v%d, 16, v%d'%(u,RAW+4*i+r)); e('v_and_b32 v%d, 0xffff0000, v%d'%(u+1,RAW+4*i+r))
    for r in range(4):
        if opt['ms']: break
        u=v(16+8*i+2*r,2); s_=v(ST+2*(i&1),2); q_=v(ST+4+2*(i&1),2)
        if i<2 and r==0: e('v_pk_add_f32 %s, %s, 0'%(s_,u)); e('v_pk_mul_f32 %s, %s, %s'%(q_,u,u))
        else: e('v_pk_add_f32 %s, %s, %s'%(s_,s_,u)); e('v_pk_fma_f32 %s, %s, %s, %s'%(q_,u,u,q_))
stamp(2)
nq=[PF]
def wnext():
    if nq[0]<12: wdma(1,nq[0]//3,nq[0]%3); nq[0]+=1
if opt['ms']:
    e.nop(8)
    for k in range(2):
        QA=160+8*k
        e('v_pk_add_f32 %s, %s, %s'%(v(QA,2),v(QA,2),v(QA+4,2))); e('v_pk_add_f32 %s, %s, %s'%(v(QA+2,2),v(QA+2,2),v(QA+6,2)))
        e('v_cndmask_b32 v%d, v%d, v%d, s[82:83]'%(QA,QA,QA+1)); e('v_cndmask_b32 v%d, v%d, v%d, s[82:83]'%(QA+2,QA+2,QA+3))
        e('v_cndmask_b32 v%d, v%d, v%d, s[84:85]'%(ST+4+2*k,QA,QA+2))
    for k in range(2): e('v_mov_b32 v%d, v%d'%(ST+2*k,152+4*k))
    e.nop(2)
else:
    for k in range(4): e('v_add_f32 v%d, v%d, v%d'%(ST+2*k,ST+2*k,ST+2*k+1))
for dpp in ('quad_perm:[1,0,3,2]','quad_perm:[2,3,0,1]','row_half_mirror'):
    for k in range(4): e.raw('  v_add_f32_dpp v%d, v%d, v%d %s row_mask:0xf bank_mask:0xf'%(ST+2*k,ST+2*k,ST+2*k,dpp)); e.pos+=1
for k in range(2):
    m,q=ST+2*k,ST+4+2*k
    e('v_mul_f32 v%d, 0xbb000000, v%d'%(m,m)); e('v_mul_f32 v%d, 0x3b000000, v%d'%(q,q)); e('v_fma_f32 v%d, -v%d, v%d, v%d'%(q,m,m,q)); e('v_max_f32 v%d, 0, v%d'%(q,q)); e('v_add_f32 v%d, 0x3727c5ac, v%d'%(q,q))
    e('v_rsq_f32 v%d, v%d'%(q,q)); e('v_mul_f32 v%d, v%d, v%d'%(m,m,q)); e('v_mov_b32 v%d, v%d'%(q+1,q)); e('v_mov_b32 v%d, v%d'%(m+1,m))
def xwrite(i): e('ds_write_b128 v6, %s offset:%d'%(v(RAW+4*i,4),(i&1)*4096+(((i>>1)&3)^(i&1))*128))
def norm(i,ST):
    L=[]
    for r in range(4): u=v(16+8*i+2*r,2); L.append('v_pk_fma_f32 %s, %s, %s, %s'%(u,u,v(ST+4+2*(i&1),2),v(ST+2*(i&1),2)))
    for r in range(4): L.append('v_cvt_pk_bf16_f32 v%d, v%d, v%d'%(RAW+4*i+r,16+8*i+2*r,17+8*i+2*r))
    return L
for i in range(8):
    for t in norm(i,ST): e(t)
    xwrite(i)
    if i%opt['wsp']==0: wnext()
while nq[0]<opt['wpre']: wnext()
XA=204
e('v_mov_b32 v%d, v7'%XA)
for s in range(1,4): e('v_xor_b32 v%d, %d, v7'%(XA+s,64*s))
e('s_waitcnt lgkmcnt(0)')
for r in range(8): e('v_mov_b32 v%d, v%d'%(208+r,ST+r))
e('s_mul_i32 %s, s7, 0x85ebca6b'%T0); e('s_add_u32 %s, %s, s6'%(T0,T0)); e('s_add_u32 s7, %s, 0x1234567'%T0); e('s_mul_i32 s6, s6, 0x9e3779b1'); e('s_add_u32 s6, s6, 0x7f4a7c15')
stamp(2); e('s_waitcnt vmcnt(%d)'%(nq[0]-3)); e('s_barrier')
stamp(3)
def xread(s):
    for T in range(2): e('ds_read_b128 %s, v%d offset:%d'%(v(XF+8*s+4*T,4),XA+(s&3),256*((s>>2)&1)+8192*T))
def wread(reg,s,only=None):
    a=reg[s//4]+(s&3)*6144; b=VR0+a//49152; a%=49152
    for j in range(3):
        for jj in range(2):
            if only is None or only==2*j+jj: e('ds_read_b64_tr_b16 %s, v%d offset:%d'%(v(WF+(s%3)*12+4*j+2*jj,2),b,a+1024*j+256*jj))
def bar(n): e('s_waitcnt vmcnt(%d)'%n); e('s_barrier')
def flag(stage):
    e('s_mov_b64 exec, 1'); e('s_lshl_b32 %s, %s, 3'%(T0,SID)); e('s_add_u32 %s, %s, %d'%(T0,T0,FL+2048*stage)); e('v_mov_b32 v4, s6'); e('v_mov_b32 v5, s7'); e('v_mov_b32 v3, 0')
    e('buffer_store_dwordx2 v[4:5], v3, %s, %s offen sc1'%(WS,T0)); e('s_mov_b64 exec, -1')
PK=208
def pack(j):
    for T in range(2):
        for r in range(2): e('v_cvt_pk_bf16_f32 v%d, v%d, v%d'%(PK+4*j+2*T+r,A+8*j+4*T+2*r,A+8*j+4*T+2*r+1))
    for r in range(2): e('v_permlane32_swap_b32 v%d, v%d'%(PK+4*j+r,PK+4*j+2+r))
pfl=[(252,W2,k*16384,0) for k in (0,22,44,65)]+[(253,W2,k*16384,0) for k in (12,34,56,76)]+[(254,WO,0,1024*k) for k in range(2)]
def pfinit():
    e('s_lshr_b32 %s, s2, 3'%T0); e('s_lshl_b32 %s, %s, 3'%(T0,T0)); e('s_add_u32 %s, %s, %s'%(T0,T0,W)); e('v_bfrev_b32 v3, 2')
    for r,n in ((252,48),(253,40)):
        e('s_mul_i32 %s, %s, %d'%(T1,T0,16*n)); e('v_add_u32 v%d, %s, v14'%(r,T1)); e('v_cmp_gt_u32 vcc, %d, v1'%n); e('v_cndmask_b32 v%d, v3, v%d, vcc'%(r,r))
    e('s_lshl_b32 %s, %s, 11'%(T1,T0)); e('v_add_u32 v254, %s, v14'%T1)
def pf1():
    if pfl: r,b,so,o=pfl.pop(0); e('s_mov_b32 %s, %d'%(T3,so)); e('buffer_load_dwordx4 v[248:251], v%d, %s, %s offen offset:%d'%(r,b,T3,o))
def poll(name,voff,base,n=1):
    e('s_mov_b32 %s, 0'%SCNT); e('s_mov_b32 %s, %d'%(T3,base)); e.label('L_p'+name)
    for i in range(n): e('buffer_load_dwordx2 %s, v%d, %s, %s offen offset:%d sc1'%(v(244+2*i,2),voff,WS,T3,512*i))
    e('s_waitcnt vmcnt(0)')
    for i in range(n):
        e('v_cmp_ne_u64 vcc, s[6:7], %s'%v(244+2*i,2)); e.nop(4); e('s_cbranch_vccnz L_r'+name)
    e('s_branch L_q'+name); e.label('L_r'+name)
    e('s_sleep 4'); e('s_add_u32 %s, %s, 1'%(SCNT,SCNT)); e('s_cmp_lt_u32 %s, 0x40000'%SCNT); e('s_cbranch_scc1 L_p'+name); e.label('L_q'+name)
KF,QF,VF=16,52,56
KV=49152
def check(name,base,n):
    e('s_waitcnt vmcnt(%d)'%n); e('v_cmp_ne_u64 vcc, s[6:7], v[244:245]'); e.nop(4); e('s_cbranch_vccz L_q'+name); poll(name,6,base)
def p1():
    e('s_lshl_b32 %s, %s, 4'%(T0,RB)); e('s_sub_u32 %s, %s, 32'%(T0,T0)); e('v_min_u32 v6, 47, v1'); e('v_add_u32 v6, %s, v6'%T0); e('v_max_i32 v6, 0, v6'); e('v_lshlrev_b32 v6, 3, v6')
    e('s_mov_b32 %s, %d'%(T3,FL)); e('buffer_load_dwordx2 v[244:245], v6, %s, %s offen sc1'%(WS,T3))
def kvld():
    check('1',FL,0)
    e('s_lshl_b32 %s, %s, 21'%(T1,KH)); e('s_lshl_b32 %s, %s, 11'%(T0,CG)); e('s_add_u32 %s, %s, %s'%(T1,T1,T0)); e('s_add_u32 %s, %s, %d'%(T1,T1,KB))
    e('s_mul_i32 %s, %s, 24576'%(T2,KH)); e('s_lshl_b32 %s, %s, 11'%(T0,TG)); e('s_add_u32 %s, %s, %s'%(T2,T2,T0))
    for i in range(3):
        e('s_sub_i32 %s, %s, %d'%(T3,QBI,4*i)); e('s_max_i32 %s, %s, 0'%(T3,T3)); e('s_lshl_b32 %s, %s, 15'%(T3,T3)); e('s_add_u32 %s, %s, %s'%(T3,T3,T1))
        e('s_add_u32 m0, %s, %d'%(T2,KV+(2-i)*8192))
        for c in range(2): e('buffer_load_dwordx4 v14, %s, %s offen offset:%d sc1 lds'%(WS,T3,1024*c))
def qld():
    e('s_lshl_b32 %s, %s, 1'%(T1,CG)); e('s_add_u32 %s, %s, %s'%(T1,T1,KH)); e('s_lshl_b32 %s, %s, 10'%(T1,T1))
    e('s_lshl_b32 %s, %s, 15'%(T0,QBI)); e('s_add_u32 %s, %s, %s'%(T3,T0,T1)); e('buffer_load_dwordx4 %s, v14, %s, %s offen sc1'%(v(QF,4),WS,T3))
def sig(off,val,lbl):
    e('v_mov_b32 v3, %d'%(CNT+off)); e('v_mov_b32 v10, 1'); e('s_mov_b64 exec, 1'); e('ds_add_rtn_u32 v10, v3, v10'); e('s_waitcnt lgkmcnt(0)'); e('s_mov_b64 exec, -1')
    e('v_readfirstlane_b32 %s, v10'%T0); e('s_cmp_lg_u32 %s, 7'%T0); e('s_cbranch_scc1 L_'+lbl); flag(val); e.label('L_'+lbl)
REG=WQR+W1R
lq=[]
def xr(s): xread(s); lq.extend([('x',s)]*2)
def wr(s): wread(REG,s); lq.extend([('w',s)]*6)
def lwait(tags):
    idx=[i for i,t in enumerate(lq) if t in tags]
    if idx:
        n=len(lq)-1-max(idx); e('s_waitcnt lgkmcnt(%d)'%min(n,15)); del lq[:max(idx)+1]
xr(0); wr(0); xr(1); wr(1)
if opt['pr']: e('s_cmp_eq_u32 %s, 0'%KH); e('s_cbranch_scc1 L_pr'); e('s_setprio 1'); e.label('L_pr')
fill=[t for i in range(8,16) for t in norm(i,208)]
S,NM,MD,MF,O,P=80,128,144,204,160,224
fil2=['v_and_b32 v4, 31, v1','v_lshrrev_b32 v5, 5, v1','v_lshlrev_b32 v5, 2, v5','v_sub_u32 v4, v4, v5','v_mov_b32 v5, 0xf149f2ca']
for r in range(16): fil2+=['v_cmp_le_i32 vcc, %d, v4'%((r&3)+8*(r>>2)),'v_mov_b32 v%d, %s'%(VF+r,ONES),'v_cndmask_b32 v%d, v5, 0, vcc'%(MD+r),'v_cndmask_b32 v%d, 0, v5, vcc'%(MF+r)]
XS={0:[2,3,4],1:[5,6,7],6:[8,9],7:[10,11],8:[12],9:[13],10:[14],11:[15]}
for s in range(32):
    q=s<16; A=ACC if q else 220
    if s in (1,2,4,6,8,10,14): stamp(2)
    if s==2: lwait([('x',7)]); bar(nq[0]-6)
    if s==6: lwait([('s',15)]); bar(3); assert nq[0]==12
    if s==10: bar(3)
    if s==14: lwait([('x',15)]); bar(3); e('v_mov_b32 v3, %d'%CNT); e('v_mov_b32 v10, 0'); e('ds_write_b32 v3, v10'); e('ds_write_b32 v3, v10 offset:4'); e('ds_write_b32 v3, v10 offset:8'); lq.extend([0,0,0])
    if s==18: bar(7)
    if s==opt['fs']<22: e('s_waitcnt vmcnt(%d)'%(3 if s>19 else 2)); sig(8,0,'f1')
    if s==22: bar(3+10-len(pfl))
    if s==22==opt['fs']: e('s_cmp_lg_u32 %s, 0'%W); e('s_cbranch_scc1 L_f1'); flag(0); e.label('L_f1')
    if s==26: bar(10-len(pfl))
    lwait([('w',s),('x',s)])
    if s<30 and not opt['il']: wr(s+2)
    if s<6 and not opt['il']: wnext()
    dm={6:(0,0),7:(0,1),8:(0,2),10:(1,0),11:(1,1),12:(1,2),14:(2,0),15:(2,1),16:(2,2),18:(3,1),19:(3,2)}
    if s in dm and not opt['il']: wdma(0,*dm[s])
    if s==opt['pe']: pfinit()
    if s==opt['p1']: p1()
    if s==opt['p1']+2: kvld()
    xs=list(XS.get(s,[]))
    for j in range(3):
        for T in range(2):
            a,b=v(WF+(s%3)*12+4*j,4),v(XF+8*(s&15)+4*T,4)
            if q and j==2: a,b=b,a
            e('v_mfma_f32_16x16x32_bf16 %s, %s, %s, %s'%(v(A+8*j+4*T,4),a,b,v(A+8*j+4*T,4) if s&15 else '0'))
            if opt['il']:
                if s<30: wread(REG,s+2,2*j+T); lq.append(('w',s+2))
                if j==1 and T==0:
                    if s<6: wnext()
                    if s in dm: wdma(0,*dm[s])
                    if s>=opt['pe'] and len(pfl)>10-opt['pn']: pf1()
            if s<4:
                for k in range(3 if j*2+T<4 else 2): e(fill.pop(0))
            if s>=24:
                for k in range(2):
                    if fil2: e(fil2.pop(0))
            if T==0 and xs: xr(xs.pop(0))
            if 2<=s<6 and T==1 and j<2: i=8+2*(s-2)+j; xwrite(i); lq.append(('s',i))
    if s==16:
        A=ACC
        e('s_and_b32 %s, %s, 1'%(T0,CG)); e('s_cmp_eq_u32 %s, 0'%T0); e('s_cselect_b32 %s, 0x3eb8aa3b, 1.0'%T1)
        for r in range(16): e('v_mul_f32 v%d, %s, v%d'%(ACC+r,T1,ACC+r))
        e('s_lshl_b32 %s, %s, 21'%(T0,T0)); e('s_lshl_b32 %s, %s, 15'%(T1,QBI)); e('s_add_u32 %s, %s, %s'%(T0,T0,T1))
        e('s_lshr_b32 %s, %s, 1'%(T3,CG)); e('s_lshl_b32 %s, %s, 2'%(T3,T3)); e('s_add_u32 %s, %s, %s'%(T3,T3,KH)); e('s_lshl_b32 %s, %s, 10'%(T3,T3)); e('s_add_u32 %s, %s, %s'%(T0,T0,T3))
        e('s_lshl_b32 %s, %s, 1'%(T3,CG)); e('s_add_u32 %s, %s, %s'%(T3,T3,KH)); e('s_lshl_b32 %s, %s, 10'%(T3,T3)); e('s_add_u32 %s, %s, %s'%(T1,T1,T3)); e('s_add_u32 %s, %s, %d'%(T1,T1,VB))
        for j in range(3):
            pack(j)
            if j<2: e('buffer_store_dwordx4 %s, v15, %s, %s offen offset:%d sc1'%(v(PK+4*j,4),WS,T0,2048*j))
            else: e('buffer_store_dwordx4 %s, v14, %s, %s offen sc1'%(v(PK+4*j,4),WS,T1))
        wdma(0,3,0)
    if s==15: stamp(3)
stamp(3)
if opt['p1']>=30: kvld()
qld()
A=220; EX=180; PK=168
e('s_mul_i32 %s, %s, 86'%(T0,QBI)); e('s_lshr_b32 %s, %s, 5'%(T1,W1A)); e('s_add_u32 %s, %s, %s'%(T0,T0,T1)); e('s_add_u32 %s, %s, %s'%(T0,T0,KH)); e('s_lshl_b32 %s, %s, 10'%(T0,T0)); e('s_add_u32 %s, %s, %d'%(T0,T0,HB))
e('s_mov_b32 s4, 0xbfb8aa3b'); e('s_mov_b32 s5, 0xbfb8aa3b')
for j in range(3):
    for r in range(0,8,2): e('v_pk_mul_f32 %s, %s, s[4:5]'%(v(EX+r,2),v(A+8*j+r,2)))
    for r in range(8): e('v_exp_f32 v%d, v%d'%(EX+r,EX+r))
    for r in range(0,8,2): e('v_pk_add_f32 %s, %s, 1.0 op_sel_hi:[1,0]'%(v(EX+r,2),v(EX+r,2)))
    for r in range(8): e('v_rcp_f32 v%d, v%d'%(EX+r,EX+r))
    for r in range(0,8,2): e('v_pk_mul_f32 %s, %s, %s'%(v(A+8*j+r,2),v(A+8*j+r,2),v(EX+r,2)))
    pack(j)
    if j==2: e('s_add_u32 %s, %s, 4096'%(T0,T0))
    e('buffer_store_dwordx4 %s, v15, %s, %s offen offset:%d sc1'%(v(PK+4*j,4),WS,T0,2048*(j&1)))
stamp()
e('v_lshrrev_b32 v3, 2, v1'); e('v_and_b32 v10, 3, v1'); e('v_lshlrev_b32 v10, 4, v10'); e('v_lshl_add_u32 v8, v3, 10, v10')
e('s_mul_i32 %s, %s, 22'%(T5,KQ)); e('s_cmp_eq_u32 %s, 3'%KQ); e('s_subb_u32 %s, %s, 0'%(T5,T5))
e('s_add_u32 %s, %s, %s'%(T2,T5,TG2)); e('s_lshl_b32 %s, %s, 14'%(T2,T2)); e('s_lshl_b32 %s, %s, 7'%(T0,CB)); e('s_add_u32 %s, %s, %s'%(T2,T2,T0))
e('s_lshl_b32 %s, %s, 11'%(T4,KQ)); e('s_lshl_b32 %s, %s, 13'%(T0,TG2)); e('s_add_u32 %s, %s, %s'%(T4,T4,T0))
def slot(u): return ((u+12)%18)*8192
def w3dma(u):
    if u==22:
        e('s_lshl_b32 %s, %s, 3'%(T2,KQ)); e('s_add_u32 %s, %s, %s'%(T2,T2,TG2)); e('s_lshl_b32 %s, %s, 14'%(T2,T2)); e('s_lshl_b32 %s, %s, 7'%(T0,CB)); e('s_add_u32 %s, %s, %s'%(T2,T2,T0))
    for j in range(2):
        e('s_add_u32 m0, %s, %d'%(T4,slot(u)+960*j)); e('buffer_load_dwordx4 v8, %s, %s offen offset:%d lds'%(W2 if u<22 else WO,T2,64*j))
    e('s_add_u32 %s, %s, 32768'%(T2,T2))
def smf(d,c): e('v_mfma_f32_32x32x16_bf16 %s, %s, %s, %s'%(v(S+16*(d%3),16),v(KF+4*d,4),v(QF,4),c))
e('s_lshl_b32 %s, %s, 1'%(T0,TG)); e('s_add_u32 %s, %s, %s'%(T0,T0,KH)); e('s_lshl_b32 %s, %s, 10'%(T0,T0)); e('s_add_u32 %s, %s, %d'%(T0,T0,KV)); e('v_add_u32 v7, %s, v14'%T0)
e('v_lshrrev_b32 v3, 5, v1'); e('v_and_b32 v10, 15, v1'); e('v_lshlrev_b32 v10, 4, v10'); e('v_lshl_add_u32 v10, v3, 8, v10'); e('s_add_u32 %s, %s, 24576'%(T0,T0)); e('v_add_u32 v9, %s, v10'%T0)
bar(3); stamp()
for d in range(9): e('ds_read_b128 %s, v7 offset:%d'%(v(KF+4*d,4),(8-d)*2048))
def vread(d):
    e('s_mov_b32 exec_lo, 0xffff'); e('s_mov_b32 exec_hi, 0xffff')
    for c in range(2): e('ds_read_b128 %s, v9 offset:%d'%(v(VF+8*(d&1)+4*c,4),(8-d)*2048+512*c))
    e('s_mov_b64 exec, -1')
n3=min(len(pfl),opt['pfp'])
for k in range(n3): pf1()
for u in range(0,2*opt['w0'],2): w3dma(u)
e('s_waitcnt lgkmcnt(0)')
c1=lambda d: v(MD,16) if d==0 else v(MF,16) if d==8 else '0'
smf(0,c1(0)); smf(1,c1(1))
for d in range(9):
    if d+2<9: smf(d+2,c1(d+2))
    b=S+16*(d%3)
    if d==0: e('v_max_f32 v4, v%d, v%d'%(b,b+1)); e('v_max_f32 v5, v%d, v%d'%(b+2,b+3))
    else: e('v_max3_f32 v4, v%d, v%d, v4'%(b,b+1)); e('v_max3_f32 v5, v%d, v%d, v5'%(b+2,b+3))
    for r in range(4,16,2): e('v_max3_f32 v%d, v%d, v%d, v%d'%(4+((r>>1)&1),b+r,b+r+1,4+((r>>1)&1)))
    if d<8: e('s_cmp_eq_u32 %s, %d'%(QBI,d)); e('s_cbranch_scc1 L_a1')
e.label('L_a1')
e('v_max_f32 v4, v4, v5'); e('v_mov_b32 v5, v4'); e('v_permlane32_swap_b32 v4, v5'); e('v_max_f32 v4, v4, v5')
e.nop(8)
for r in range(16): e('v_sub_f32 v%d, v%d, v4'%(MD+r,MD+r))
for r in range(16): e('v_sub_f32 v%d, 0, v4'%(NM+r))
for r in range(16): e('v_sub_f32 v%d, v%d, v4'%(MF+r,MF+r))
e('s_waitcnt vmcnt(%d)'%(2*opt['w0']+n3))
sig(0,1,'f2')
e('s_lshr_b32 %s, %s, 1'%(T0,RB2)); e('s_lshl_b32 %s, %s, 7'%(T0,T0)); e('v_and_b32 v6, 15, v1'); e('v_lshlrev_b32 v6, 3, v6'); e('v_add_u32 v6, %s, v6'%T0)
e('s_mov_b32 %s, %d'%(T1,FL+2048))
vread(0)
c2=lambda d: v(MD,16) if d==0 else v(MF,16) if d==8 else v(NM,16)
smf(0,c2(0))
for d in range(9):
    if d<8:
        e('s_cmp_lg_u32 %s, %d'%(QBI,d)); e('s_cbranch_scc1 L_m%d'%d)
        for r in range(16): e('v_mov_b32 v%d, 0xf149f2ca'%(NM+r)); e('v_mov_b32 v%d, 0xf149f2ca'%(MF+r))
        e.label('L_m%d'%d)
        smf(d+1,c2(d+1)); vread(d+1)
    if d+opt['w0']<6: w3dma(2*(d+opt['w0']))
    pf1()
    if d==8: e('buffer_load_dwordx2 v[244:245], v6, %s, %s offen sc1'%(WS,T1))
    b=S+16*(d%3); p=P+8*(d&1)
    for c in range(2):
        for r in range(8): e('v_exp_f32 v%d, v%d'%(b+8*c+r,b+8*c+r))
        for r in range(4): e('v_cvt_pk_bf16_f32 v%d, v%d, v%d'%(p+4*c+r,b+8*c+2*r,b+8*c+2*r+1))
    e('s_waitcnt lgkmcnt(%d)'%(2 if d<8 else 0))
    for c in range(2): e('v_mfma_f32_32x32x16_bf16 %s, %s, %s, %s'%(v(O,16),v(VF+8*(d&1)+4*c,4),v(p+4*c,4),v(O,16) if d+c else '0'))

e('v_rcp_f32 v4, v%d'%(O+8))
for r in range(8): e('v_mul_f32 v%d, v%d, v4'%(O+r,O+r))
for r in range(4): e('v_cvt_pk_bf16_f32 v%d, v%d, v%d'%(192+r,O+2*r,O+2*r+1))
stamp()
e('s_lshl_b32 %s, %s, 5'%(T0,QBI)); e('s_lshl_b32 %s, %s, 1'%(T1,CG)); e('s_add_u32 %s, %s, %s'%(T0,T0,T1)); e('s_add_u32 %s, %s, %s'%(T0,T0,KH)); e('s_lshl_b32 %s, %s, 10'%(T0,T0)); e('s_add_u32 %s, %s, %d'%(T0,T0,OB))
e('buffer_store_dwordx4 %s, v14, %s, %s offen sc1'%(v(192,4),WS,T0))
HF,A3,W3,XR=16,136,168,204
HS,OS=WQA,WQB
e('s_lshl_b32 %s, %s, 1'%(T1,RB2)); e('s_add_u32 %s, %s, %s'%(T1,T1,TG2))
e('s_mul_i32 %s, %s, 86'%(HS,T1)); e('s_add_u32 %s, %s, %s'%(HS,HS,T5)); e('s_lshl_b32 %s, %s, 10'%(HS,HS)); e('s_add_u32 %s, %s, %d'%(HS,HS,HB))
e('s_lshl_b32 %s, %s, 5'%(OS,T1)); e('s_lshl_b32 %s, %s, 3'%(T3,KQ)); e('s_add_u32 %s, %s, %s'%(OS,OS,T3)); e('s_lshl_b32 %s, %s, 10'%(OS,OS)); e('s_add_u32 %s, %s, %d'%(OS,OS,OB))
if opt['fin']==0: e('v_lshrrev_b32 v3, 3, v0'); e('v_and_b32 v10, 7, v0'); e('v_lshlrev_b32 v10, 4, v10'); e('v_lshl_add_u32 v9, v3, 10, v10')
else: e('v_and_b32 v3, 31, v1'); e('v_lshrrev_b32 v10, 5, v1'); e('v_lshlrev_b32 v10, 4, v10'); e('v_lshl_add_u32 v9, v3, 10, v10'); e('s_lshl_b32 %s, %s, 15'%(T0,TG2)); e('s_lshl_b32 %s, %s, 5'%(T3,KQ)); e('s_add_u32 %s, %s, %s'%(T0,T0,T3)); e('v_add_u32 v9, %s, v9'%T0)
e('v_lshrrev_b32 v10, 5, v1'); e('v_bfe_u32 v3, v1, 2, 2'); e('v_lshl_add_u32 v3, v10, 2, v3'); e('v_lshlrev_b32 v3, 6, v3')
e('v_and_b32 v11, 16, v1'); e('v_lshl_add_u32 v3, v11, 1, v3'); e('v_and_b32 v11, 3, v1'); e('v_lshl_add_u32 v3, v11, 3, v3')
e('s_lshl_b32 %s, %s, 11'%(T0,KQ)); e('v_add_u32 v11, %s, v3'%T0); e('v_add_u32 v12, 49152, v11'); e('v_add_u32 v13, 98304, v11')
check('2',FL+2048,1); stamp()
vq=['o']
def vw(tags,extra=''):
    idx=[i for i,t in enumerate(vq) if t in tags]
    if idx: n=len(vq)-1-max(idx); del vq[:max(idx)+1]; e('s_waitcnt vmcnt(%d) %s'%(n,extra))
    elif extra: e('s_waitcnt '+extra)
def ald(u):
    k=u if u<22 else u-22; r=HS if u<22 else OS
    e('buffer_load_dwordx4 %s, v14, %s, %s offen offset:%d sc1'%(v(HF+4*u,4),WS,r,1024*(k&3))); vq.append(('a',u))
    if k&3==3: e('s_add_u32 %s, %s, 4096'%(r,r))
def w3d(u): w3dma(u); vq.extend([('w',u)]*2)
LA=opt['la']
for u in range(LA): ald(u)
e('s_barrier'); stamp()
def w3read(u):
    a=slot(u); b=VR0+a//49152; a%=49152
    for j in range(2):
        for jj in range(2): e('ds_read_b64_tr_b16 %s, v%d offset:%d'%(v(W3+(u%3)*8+4*j+2*jj,2),b,a+1024*j+512*jj))
w3read(0); w3read(1)
WD={1:12,3:14,5:16,6:18,8:20,10:22,16:24,17:26,18:28}
na=[LA]; PU=opt['pu']
for u in range(30):
    if u==6: e('s_barrier')
    if u==10: vw([('w',16)]); e('s_barrier')
    if u==16: vw([('w',22)]); e('s_barrier'); stamp()
    if u==22: vw([('w',28)]); e('s_barrier'); stamp()
    if u==26 and opt['fin']: e('s_barrier')
    if u==29:
        vw(['x'])
        if opt['fin']:
            for r in range(2): e('v_permlane32_swap_b32 v%d, v%d'%(XR+r,XR+2+r))
    if u==PU-2: e('s_mov_b32 %s, %d'%(T1,FL+4096)); e('buffer_load_dwordx2 v[244:245], v6, %s, %s offen sc1'%(WS,T1)); vq.append('p')
    if u==PU: n=len(vq)-1-vq.index('p'); del vq[:vq.index('p')+1]; check('3',FL+4096,n)
    if u+2<30: w3read(u+2)
    if u in WD: w3d(WD[u])
    for k in range(2 if u>=PU else 1):
        if na[0]<(30 if u>=PU else 22): ald(na[0]); na[0]+=1
    if u==20:
        e('s_lshl_b32 %s, %s, 16'%(T3,RB2)); e('s_lshl_b32 %s, %s, 7'%(T0,CB)); e('s_add_u32 %s, %s, %s'%(T3,T3,T0))
        e('buffer_load_dwordx4 %s, v9, %s, %s offen'%(v(XR,4),X,T3)); vq.append('x')
    lg=8 if u+2<30 else 4 if u+1<30 else 0
    vw([('a',u)],'lgkmcnt(%d)'%lg)
    if u==21: e('s_cmp_ge_u32 %s, 2'%KQ); e('s_cbranch_scc1 L_s21')
    for j in range(2): e('v_mfma_f32_32x32x16_bf16 %s, %s, %s, %s'%(v(A3+16*j,16),v(W3+(u%3)*8+4*j,4),v(HF+4*u,4),v(A3+16*j,16) if u else '0'))
    if u==21: e.label('L_s21')
    if u==0: sig(4,2,'f3')
    if u==2:
        e('s_or_b32 %s, %s, %s'%(T0,SID,W)); e('s_cmp_lg_u32 %s, 0'%T0); e('s_cbranch_scc1 L_noep')
        e('v_lshlrev_b32 v7, 3, v1'); poll('e',7,FL,4)
        e('v_mov_b32 v4, s6'); e('v_mov_b32 v5, s7'); e('v_mov_b32 v3, 0'); e('s_mov_b32 %s, %d'%(T0,EP)); e('s_mov_b64 exec, 1'); e('buffer_store_dwordx2 v[4:5], v3, %s, %s offen sc1'%(WS,T0)); e('s_mov_b64 exec, -1')
        e.label('L_noep')
stamp()
if opt['fin']==0:
    e('s_barrier')
    e('s_mul_i32 %s, %s, 17408'%(T0,KQ)); e('s_mul_i32 %s, %s, 8704'%(T3,TG2)); e('s_add_u32 %s, %s, %s'%(T0,T0,T3))
    e('v_and_b32 v3, 31, v1'); e('v_mul_u32_u24 v3, 272, v3'); e('v_lshrrev_b32 v10, 5, v1'); e('v_lshl_add_u32 v3, v10, 4, v3'); e('v_add_u32 v3, %s, v3'%T0)
    for j in range(2):
        for q in range(4): e('ds_write_b128 v3, %s offset:%d'%(v(A3+16*j+4*q,4),128*j+32*q))
    e('v_lshrrev_b32 v3, 3, v0'); e('v_mul_u32_u24 v3, 272, v3'); e('v_and_b32 v10, 7, v0'); e('v_lshl_add_u32 v3, v10, 5, v3')
    for r in range(4): e('v_lshlrev_b32 v%d, 16, v%d'%(64+2*r,XR+r)); e('v_and_b32 v%d, 0xffff0000, v%d'%(65+2*r,XR+r))
    e('s_waitcnt lgkmcnt(0)'); e('s_barrier')
    for k in range(4):
        for i in range(2): e('ds_read_b128 %s, v3 offset:%d'%(v(16+8*k+4*i,4),17408*k+16*i))
    for k in range(4):
        e('s_waitcnt lgkmcnt(%d)'%(6-2*k))
        for r in range(8): e('v_add_f32 v%d, v%d, v%d'%(64+r,64+r,16+8*k+r))
    for r in range(4): e('v_cvt_pk_bf16_f32 v%d, v%d, v%d'%(72+r,64+2*r,65+2*r))
    e('s_lshl_b32 %s, %s, 16'%(T3,RB2)); e('s_lshl_b32 %s, %s, 7'%(T0,CB)); e('s_add_u32 %s, %s, %s'%(T3,T3,T0))
    e('buffer_store_dwordx4 v[72:75], v9, %s, %s offen'%(OUT,T3))
else:
    FB=98304
    e('s_lshl_b32 %s, %s, 11'%(T0,W)); e('s_add_u32 %s, %s, %d'%(T0,T0,FB)); e('v_add_u32 v3, %s, v14'%T0); e.nop(16)
    for k in range(4):
        e('s_cmp_eq_u32 %s, %d'%(KQ,k)); e('s_cbranch_scc1 L_o%d'%k)
        for i in range(2): e('ds_write_b128 v3, %s offset:%d'%(v(A3+8*k+4*i,4),16384*k+1024*i))
        e('s_branch L_n%d'%k); e.label('L_o%d'%k)
        for r in range(4):
            e('v_lshlrev_b32 v%d, 16, v%d'%(64+2*r,XR+r)); e('v_and_b32 v%d, 0xffff0000, v%d'%(65+2*r,XR+r))
            e('v_pk_add_f32 %s, %s, %s'%(v(64+2*r,2),v(64+2*r,2),v(A3+8*k+2*r,2)))
        e.label('L_n%d'%k)
    e('s_lshl_b32 %s, %s, 14'%(T0,KQ)); e('s_add_u32 %s, %s, %d'%(T0,T0,FB))
    for k in range(1,4):
        e('s_add_u32 %s, %s, %d'%(T1,W,2*k)); e('s_and_b32 %s, %s, 7'%(T1,T1)); e('s_lshl_b32 %s, %s, 11'%(T1,T1)); e('s_add_u32 %s, %s, %s'%(T1,T1,T0)); e('v_add_u32 v%d, %s, v14'%(3+k,T1))
    e('s_waitcnt lgkmcnt(0)'); e('s_barrier')
    for k in range(1,4):
        for i in range(2): e('ds_read_b128 %s, v%d offset:%d'%(v(16+8*k+4*i,4),3+k,1024*i))
    for k in range(1,4):
        e('s_waitcnt lgkmcnt(%d)'%(6-2*k))
        for r in range(4): e('v_pk_add_f32 %s, %s, %s'%(v(64+2*r,2),v(64+2*r,2),v(16+8*k+2*r,2)))
    for r in range(4): e('v_cvt_pk_bf16_f32 v%d, v%d, v%d'%(72+r,64+2*r,65+2*r))
    for r in range(2): e('v_permlane32_swap_b32 v%d, v%d'%(72+r,74+r))
    e('s_lshl_b32 %s, %s, 16'%(T3,RB2)); e('s_lshl_b32 %s, %s, 7'%(T0,CB)); e('s_add_u32 %s, %s, %s'%(T3,T3,T0))
    e('buffer_store_dwordx4 v[72:75], v9, %s, %s offen %s'%(OUT,T3,['','sc1','nt','sc0 sc1'][opt['ost']]))
if opt['stamp']:
    stamp(3); e('s_memrealtime s[62:63]'); e('s_waitcnt lgkmcnt(0)')
    e('s_lshl_b32 %s, s2, 3'%T0); e('s_add_u32 %s, %s, %s'%(T0,T0,W)); e('s_lshl_b32 %s, %s, 7'%(T0,T0)); e('s_add_u32 %s, %s, %d'%(T0,T0,15<<20))
    e('v_mov_b32 v3, 0'); e('s_mov_b64 exec, 1')
    for i in range(nst[0]+2):
        e('v_mov_b32 v10, s%d'%(60+2*i)); e('buffer_store_dword v10, v3, %s, %s offen offset:%d'%(WS,T0,4*i))
e.label('L_end'); e('s_endpgm')
hdr=open('cdna_kernels/%s.s.ref'%NAME).read().split('; Override')[0]
txt=hdr+'''; @launch grid=(256,1,1) block=(512,1,1) lds=163840
.amdgcn_target "amdgcn-amd-amdhsa--gfx950"
.text
.globl %s_kernel
.p2align 8
.type %s_kernel,@function
%s_kernel:
'''%(NAME,NAME,NAME)+e.text()+'''.section .rodata,"a"
.p2align 6
.amdhsa_kernel %s_kernel
  .amdhsa_next_free_vgpr 256
  .amdhsa_next_free_sgpr 102
  .amdhsa_accum_offset 256
  .amdhsa_group_segment_fixed_size 0
  .amdhsa_kernarg_size 72
  .amdhsa_user_sgpr_count 2
  .amdhsa_user_sgpr_kernarg_segment_ptr 1
  .amdhsa_system_sgpr_workgroup_id_x 1
.end_amdhsa_kernel
'''%NAME
open(sys.argv[1],'w').write(txt)
```

```python
import sys
from emit import E
NAME='parallel_sum__sliding_block__dense_activation_silu__prompt'
opt=dict(stamp=0,map=1,rot=1,pf=4,wsp=16,il=1,pr=1,fs=20,wpre=6,w0=0,la=6,pu=19,pfp=0,pe=21,pn=7,cp=1,tl=1,p1=30,fin=1,ms=1,ost=0)
for a in sys.argv[2:]:
    k,v=a.split('='); opt[k]=int(v)
e=E()
QB,KB,VB,OB,HB=0,2<<20,4<<20,6<<20,8<<20
X,WQ,WO,W1,W2,OUT,DBG,WS=['s[%d:%d]'%(8+4*i,11+4*i) for i in range(8)]
RB,CG,W,TG,KH,ONES,QBI,T0,T1,T2,T3,RB2,CB,KQ,TG2,SID,T4,T5,SCNT,ROT,TGS,WQA,WQB,W1A='s40 s41 s42 s43 s44 s45 s46 s47 s48 s49 s50 s51 s52 s53 s54 s55 s56 s57 s58 s59 s3 s98 s99 s100'.split()
EP=14<<20; FL=EP+4096
def v(a,n=1): return 'v%d'%a if n==1 else 'v[%d:%d]'%(a,a+n-1)
nst=[0]
def stamp(l=1):
    if opt['stamp']&l and nst[0]<16:
        i=nst[0]; nst[0]+=1
        e('s_memtime s[%d:%d]'%(64+2*i,65+2*i)); e('s_waitcnt lgkmcnt(0)')
VWQ,VW1,VR0=8,9,11
XF,ACC,WF,RAW=16,144,168,192
CNT=160768; XR=98304
e('s_cmp_ge_u32 s2, 256'); e('s_cbranch_scc1 L_end')
if opt['stamp']: e('s_memrealtime s[60:61]'); e('s_memtime s[96:97]'); e('s_waitcnt lgkmcnt(0)'); e('s_mov_b32 s101, s96')
e('s_load_dwordx16 s[64:79], s[0:1], 0'); e('s_load_dwordx2 s[80:81], s[0:1], 64')
e('v_lshrrev_b32 v3, 6, v0'); e('v_and_b32 v1, 63, v0'); e('v_readfirstlane_b32 %s, v3'%W)
e('s_and_b32 %s, s2, 7'%T0); e('s_lshr_b32 %s, s2, 3'%T1)
if opt['cp']:
    e('s_getpc_b64 s[4:5]'); e.label('L_pc')
    e('v_lshl_add_u32 v4, %s, 3, v3'%T1); e('v_min_u32 v4, (L_end-L_pc)>>7, v4'); e('v_lshlrev_b32 v4, 7, v4'); e('v_mov_b32 v5, s5')
    e('v_add_co_u32 v4, vcc, s4, v4'); e('v_addc_co_u32 v5, vcc, 0, v5, vcc'); e('global_load_dword v2, v[4:5], off'); e.nop(2)
if opt['map']==0:
    e('s_lshr_b32 %s, %s, 4'%(RB,T1)); e('s_lshl_b32 %s, %s, 1'%(T2,T0)); e('s_add_u32 %s, %s, %s'%(RB,RB,T2)); e('s_and_b32 %s, %s, 15'%(CG,T1))
else:
    e('s_lshr_b32 %s, %s, 3'%(RB,T1)); e('s_lshr_b32 %s, %s, 1'%(T2,T0)); e('s_lshl_b32 %s, %s, 2'%(T2,T2)); e('s_add_u32 %s, %s, %s'%(RB,RB,T2))
    e('s_and_b32 %s, %s, 7'%(CG,T1)); e('s_and_b32 %s, %s, 1'%(T2,T0)); e('s_lshl_b32 %s, %s, 3'%(T2,T2)); e('s_add_u32 %s, %s, %s'%(CG,CG,T2))
e('s_lshr_b32 %s, %s, 3'%(RB2,T1)); e('s_lshl_b32 %s, %s, 2'%(T2,T0)); e('s_add_u32 %s, %s, %s'%(RB2,RB2,T2)); e('s_and_b32 %s, %s, 7'%(CB,T1))
e('s_lshl_b32 %s, %s, 4'%(SID,RB)); e('s_add_u32 %s, %s, %s'%(SID,SID,CG))
e('s_and_b32 %s, %s, 3'%(TG,W)); e('s_lshr_b32 %s, %s, 2'%(KH,W)); e('s_and_b32 %s, %s, 1'%(TG2,W)); e('s_lshr_b32 %s, %s, 1'%(KQ,W))
e('s_lshl_b32 %s, %s, 2'%(QBI,RB)); e('s_add_u32 %s, %s, %s'%(QBI,QBI,TG)); e('s_mov_b32 %s, 0x3f803f80'%ONES)
if opt['rot']: e('s_lshl_b32 %s, %s, 1'%(ROT,RB)); e('s_add_u32 %s, %s, %s'%(ROT,ROT,CG)); e('s_and_b32 %s, %s, 7'%(ROT,ROT))
else: e('s_mov_b32 %s, 0'%ROT)
e('v_lshrrev_b32 v3, 3, v1'); e('v_and_b32 v10, 7, v1'); e('v_lshlrev_b32 v4, 4, v10'); e('v_lshl_add_u32 v4, v3, 10, v4'); e('v_add_u32 v5, 8192, v4')
e('s_lshl_b32 %s, %s, 17'%(T0,RB)); e('s_lshl_b32 %s, %s, 14'%(T1,W)); e('s_add_u32 %s, %s, %s'%(T0,T0,T1))
e('s_waitcnt lgkmcnt(0)')
sz=[2097152,1572864,524288,1409024,1409024,2097152,256,16<<20]
src=[64,66,68,72,74,76,78,80]
def srd(i):
    b=8+4*i
    e('s_mov_b32 s%d, s%d'%(b,src[i])); e('s_mov_b32 s%d, s%d'%(b+1,src[i]+1)); e('s_mov_b32 s%d, %d'%(b+2,sz[i])); e('s_mov_b32 s%d, 0x20000'%(b+3))
srd(0)
PF=opt['pf']
e('s_mov_b32 %s, %s'%(T5,T0)); e('s_mov_b32 %s, %s'%(SCNT,ROT))
def xld(i):
    sg,rg=i>>1,i&1
    if rg==0: e('s_add_u32 %s, %s, %d'%(TGS,SCNT,sg)); e('s_and_b32 %s, %s, 7'%(TGS,TGS)); e('s_lshl_b32 %s, %s, 7'%(TGS,TGS)); e('s_add_u32 %s, %s, %s'%(TGS,TGS,T5))
    e('buffer_load_dwordx4 %s, v%d, %s, %s offen'%(v(RAW+4*i,4),4+rg,X,TGS))
for i in range(PF): xld(i)
e('s_add_u32 s4, s80, %d'%EP); e('s_addc_u32 s5, s81, 0'); e('s_load_dwordx2 s[6:7], s[4:5], 0')
for i in range(1,8): srd(i)
if opt['stamp']: e('s_mov_b32 s64, s101'); nst[0]=1
e('v_xor_b32 v10, v10, v3'); e('v_lshlrev_b32 v10, 4, v10'); e('v_lshl_add_u32 v6, v3, 9, v10'); e('s_lshl_b32 %s, %s, 13'%(T1,W)); e('s_add_u32 %s, %s, %d'%(T1,T1,XR)); e('v_add_u32 v6, %s, v6'%T1)
e('v_lshrrev_b32 v3, 2, v1'); e('v_lshrrev_b32 v10, 5, v1'); e('v_lshlrev_b32 v10, 1, v10'); e('v_xor_b32 v10, v10, v1'); e('v_and_b32 v10, 3, v10'); e('v_lshlrev_b32 v10, 4, v10')
e('v_mul_u32_u24 v8, 3072, v3'); e('v_add_u32 v8, v8, v10'); e('v_mul_u32_u24 v9, 2752, v3'); e('v_add_u32 v9, v9, v10')
e('v_lshlrev_b32 v14, 4, v1')
e('s_mul_i32 %s, %s, 3072'%(T4,W))
e('s_lshl_b32 %s, %s, 6'%(WQB,CG)); e('s_add_u32 %s, %s, 2048'%(WQB,WQB))
e('s_and_b32 %s, %s, 1'%(WQA,CG)); e('s_lshl_b32 %s, %s, 10'%(WQA,WQA)); e('s_lshr_b32 %s, %s, 1'%(T0,CG)); e('s_lshl_b32 %s, %s, 7'%(T0,T0)); e('s_add_u32 %s, %s, %s'%(WQA,WQA,T0))
e('s_mul_i32 %s, %s, 3'%(W1A,CG)); e('s_min_u32 %s, %s, 40'%(W1A,W1A)); e('s_lshl_b32 %s, %s, 6'%(W1A,W1A))
e('s_add_u32 %s, %s, %s'%(ROT,ROT,KH))
WQR=[0,24576,49152,73728]; W1R=[0,24576,98304,98304+24576]
def wdma(q,c,j):
    if j==0:
        e('s_add_u32 %s, %s, %d'%(T2,ROT,2*c)); e('s_and_b32 %s, %s, 7'%(T2,T2)); e('s_lshl_b32 %s, %s, 2'%(T2,T2)); e('s_add_u32 %s, %s, %s'%(T2,T2,TG))
        if q: e('s_mul_i32 %s, %s, 49152'%(T2,T2)); e('s_add_u32 %s, %s, %s'%(T3,T2,WQB)); e('s_add_u32 %s, %s, %s'%(T2,T2,WQA))
        else: e('s_mul_i32 %s, %s, 44032'%(T2,T2)); e('s_add_u32 %s, %s, %s'%(T2,T2,W1A))
    if q and j==2: e('s_add_u32 m0, %s, %d'%(T4,WQR[c]+2048)); e('buffer_load_dwordx4 v%d, %s, %s offen lds'%(VWQ,WQ,T3))
    elif q: e('s_add_u32 m0, %s, %d'%(T4,WQR[c]+960*j)); e('buffer_load_dwordx4 v%d, %s, %s offen offset:%d lds'%(VWQ,WQ,T2,64*j))
    else: e('s_add_u32 m0, %s, %d'%(T4,W1R[c]+960*j)); e('buffer_load_dwordx4 v%d, %s, %s offen offset:%d lds'%(VW1,W1,T2,64*j))
XA=160
e('v_and_b32 v3, 15, v1'); e('v_lshrrev_b32 v10, 4, v1'); e('v_xor_b32 v11, v10, v3'); e('v_lshlrev_b32 v11, 4, v11'); e('v_lshl_add_u32 v11, v3, 9, v11')
e('s_lshl_b32 %s, %s, 14'%(T1,TG)); e('s_add_u32 %s, %s, %d'%(T1,T1,XR)); e('v_add_u32 v7, %s, v11'%T1)
e('v_lshrrev_b32 v11, 5, v1'); e('v_lshl_add_u32 v15, v11, 4, v3'); e('v_and_b32 v12, 1, v10'); e('v_lshl_add_u32 v15, v12, 5, v15'); e('v_lshlrev_b32 v15, 4, v15')
e('v_mul_u32_u24 v11, 3072, v11'); e('v_lshl_add_u32 v11, v12, 9, v11'); e('v_xor_b32 v12, %s, v12'%KH); e('v_lshl_add_u32 v11, v12, 5, v11')
e('v_bfe_u32 v3, v1, 2, 2'); e('v_lshl_add_u32 v11, v3, 6, v11'); e('v_and_b32 v3, 3, v1'); e('v_lshl_add_u32 v11, v3, 3, v11')
e('v_add_u32 v12, 49152, v11'); e('v_add_u32 v13, 98304, v11')
ST=144
e('v_lshrrev_b32 v3, 4, v1'); e('v_bfe_u32 v10, v1, 2, 2'); e('v_cmp_eq_u32 vcc, v3, v10'); e('v_mov_b32 v3, %s'%ONES)
for r in range(4): e('v_cndmask_b32 v%d, 0, v3, vcc'%(176+r))
e('s_mov_b32 s82, 0xaaaaaaaa'); e('s_mov_b32 s83, s82'); e('s_mov_b32 s84, 0xcccccccc'); e('s_mov_b32 s85, s84')
for i in range(16):
    e('s_waitcnt vmcnt(%d)'%(PF-1))
    if i in (0,8): stamp(2)
    if i+PF<16: xld(i+PF)
    else: wdma(1,(i+PF-16)//3,(i+PF-16)%3)
    SA,QA=152+4*(i&1),160+8*(i&1)
    if opt['ms']: e('v_mfma_f32_16x16x32_bf16 %s, v[176:179], %s, %s'%(v(SA,4),v(RAW+4*i,4),v(SA,4) if i>1 else '0'))
    for r in range(4):
        u=16+8*i+2*r
        if opt['ms'] and r&1==0: e('v_mfma_f32_4x4x4_16b_bf16 %s, %s, %s, %s'%(v(QA+2*r,4),v(RAW+4*i+r,2),v(RAW+4*i+r,2),v(QA+2*r,4) if i>1 else '0'))
        e('v_lshlrev_b32 v%d, 16, v%d'%(u,RAW+4*i+r)); e('v_and_b32 v%d, 0xffff0000, v%d'%(u+1,RAW+4*i+r))
    for r in range(4):
        if opt['ms']: break
        u=v(16+8*i+2*r,2); s_=v(ST+2*(i&1),2); q_=v(ST+4+2*(i&1),2)
        if i<2 and r==0: e('v_pk_add_f32 %s, %s, 0'%(s_,u)); e('v_pk_mul_f32 %s, %s, %s'%(q_,u,u))
        else: e('v_pk_add_f32 %s, %s, %s'%(s_,s_,u)); e('v_pk_fma_f32 %s, %s, %s, %s'%(q_,u,u,q_))
stamp(2)
nq=[PF]
def wnext():
    if nq[0]<12: wdma(1,nq[0]//3,nq[0]%3); nq[0]+=1
if opt['ms']:
    e.nop(8)
    for k in range(2):
        QA=160+8*k
        e('v_pk_add_f32 %s, %s, %s'%(v(QA,2),v(QA,2),v(QA+4,2))); e('v_pk_add_f32 %s, %s, %s'%(v(QA+2,2),v(QA+2,2),v(QA+6,2)))
        e('v_cndmask_b32 v%d, v%d, v%d, s[82:83]'%(QA,QA,QA+1)); e('v_cndmask_b32 v%d, v%d, v%d, s[82:83]'%(QA+2,QA+2,QA+3))
        e('v_cndmask_b32 v%d, v%d, v%d, s[84:85]'%(ST+4+2*k,QA,QA+2))
    for k in range(2): e('v_mov_b32 v%d, v%d'%(ST+2*k,152+4*k))
    e.nop(2)
else:
    for k in range(4): e('v_add_f32 v%d, v%d, v%d'%(ST+2*k,ST+2*k,ST+2*k+1))
for dpp in ('quad_perm:[1,0,3,2]','quad_perm:[2,3,0,1]','row_half_mirror'):
    for k in range(4): e.raw('  v_add_f32_dpp v%d, v%d, v%d %s row_mask:0xf bank_mask:0xf'%(ST+2*k,ST+2*k,ST+2*k,dpp)); e.pos+=1
for k in range(2):
    m,q=ST+2*k,ST+4+2*k
    e('v_mul_f32 v%d, 0xbb000000, v%d'%(m,m)); e('v_mul_f32 v%d, 0x3b000000, v%d'%(q,q)); e('v_fma_f32 v%d, -v%d, v%d, v%d'%(q,m,m,q)); e('v_max_f32 v%d, 0, v%d'%(q,q)); e('v_add_f32 v%d, 0x3727c5ac, v%d'%(q,q))
    e('v_rsq_f32 v%d, v%d'%(q,q)); e('v_mul_f32 v%d, v%d, v%d'%(m,m,q)); e('v_mov_b32 v%d, v%d'%(q+1,q)); e('v_mov_b32 v%d, v%d'%(m+1,m))
def xwrite(i): e('ds_write_b128 v6, %s offset:%d'%(v(RAW+4*i,4),(i&1)*4096+(((i>>1)&3)^(i&1))*128))
def norm(i,ST):
    L=[]
    for r in range(4): u=v(16+8*i+2*r,2); L.append('v_pk_fma_f32 %s, %s, %s, %s'%(u,u,v(ST+4+2*(i&1),2),v(ST+2*(i&1),2)))
    for r in range(4): L.append('v_cvt_pk_bf16_f32 v%d, v%d, v%d'%(RAW+4*i+r,16+8*i+2*r,17+8*i+2*r))
    return L
for i in range(8):
    for t in norm(i,ST): e(t)
    xwrite(i)
    if i%opt['wsp']==0: wnext()
while nq[0]<opt['wpre']: wnext()
TL=2*opt['tl']
if TL:
    assert nq[0]==6
    e('v_lshrrev_b32 v3, 3, v0'); e('v_lshlrev_b32 v3, 18, v3'); e('buffer_load_dword v2, v3, %s, 0 offen sc1'%WS)
    e('s_lshl_b32 %s, %s, 16'%(T0,RB2)); e('v_mov_b32 v10, 0'); e('buffer_load_dword v2, v10, %s, %s offen sc1'%(OUT,T0))
XA=204
e('v_mov_b32 v%d, v7'%XA)
for s in range(1,4): e('v_xor_b32 v%d, %d, v7'%(XA+s,64*s))
e('s_waitcnt lgkmcnt(0)')
for r in range(8): e('v_mov_b32 v%d, v%d'%(208+r,ST+r))
e('s_mul_i32 %s, s7, 0x85ebca6b'%T0); e('s_add_u32 %s, %s, s6'%(T0,T0)); e('s_add_u32 s7, %s, 0x1234567'%T0); e('s_mul_i32 s6, s6, 0x9e3779b1'); e('s_add_u32 s6, s6, 0x7f4a7c15')
stamp(2); e('s_waitcnt vmcnt(%d)'%(nq[0]-3+TL)); e('s_barrier')
stamp(3)
def xread(s):
    for T in range(2): e('ds_read_b128 %s, v%d offset:%d'%(v(XF+8*s+4*T,4),XA+(s&3),256*((s>>2)&1)+8192*T))
def wread(reg,s,only=None):
    a=reg[s//4]+(s&3)*6144; b=VR0+a//49152; a%=49152
    for j in range(3):
        for jj in range(2):
            if only is None or only==2*j+jj: e('ds_read_b64_tr_b16 %s, v%d offset:%d'%(v(WF+(s%3)*12+4*j+2*jj,2),b,a+1024*j+256*jj))
def bar(n): e('s_waitcnt vmcnt(%d)'%n); e('s_barrier')
def flag(stage):
    e('s_mov_b64 exec, 1'); e('s_lshl_b32 %s, %s, 3'%(T0,SID)); e('s_add_u32 %s, %s, %d'%(T0,T0,FL+2048*stage)); e('v_mov_b32 v4, s6'); e('v_mov_b32 v5, s7'); e('v_mov_b32 v3, 0')
    e('buffer_store_dwordx2 v[4:5], v3, %s, %s offen sc1'%(WS,T0)); e('s_mov_b64 exec, -1')
PK=208
def pack(j):
    for T in range(2):
        for r in range(2): e('v_cvt_pk_bf16_f32 v%d, v%d, v%d'%(PK+4*j+2*T+r,A+8*j+4*T+2*r,A+8*j+4*T+2*r+1))
    for r in range(2): e('v_permlane32_swap_b32 v%d, v%d'%(PK+4*j+r,PK+4*j+2+r))
pfl=[(252,W2,k*16384,0) for k in (0,22,44,65)]+[(253,W2,k*16384,0) for k in (12,34,56,76)]+[(254,WO,0,1024*k) for k in range(2)]
def pfinit():
    e('s_lshr_b32 %s, s2, 3'%T0); e('s_lshl_b32 %s, %s, 3'%(T0,T0)); e('s_add_u32 %s, %s, %s'%(T0,T0,W)); e('v_bfrev_b32 v3, 2')
    for r,n in ((252,48),(253,40)):
        e('s_mul_i32 %s, %s, %d'%(T1,T0,16*n)); e('v_add_u32 v%d, %s, v14'%(r,T1)); e('v_cmp_gt_u32 vcc, %d, v1'%n); e('v_cndmask_b32 v%d, v3, v%d, vcc'%(r,r))
    e('s_lshl_b32 %s, %s, 11'%(T1,T0)); e('v_add_u32 v254, %s, v14'%T1)
def pf1():
    if pfl: r,b,so,o=pfl.pop(0); e('s_mov_b32 %s, %d'%(T3,so)); e('buffer_load_dwordx4 v[248:251], v%d, %s, %s offen offset:%d'%(r,b,T3,o))
def poll(name,voff,base,n=1):
    e('s_mov_b32 %s, 0'%SCNT); e('s_mov_b32 %s, %d'%(T3,base)); e.label('L_p'+name)
    for i in range(n): e('buffer_load_dwordx2 %s, v%d, %s, %s offen offset:%d sc1'%(v(244+2*i,2),voff,WS,T3,512*i))
    e('s_waitcnt vmcnt(0)')
    for i in range(n):
        e('v_cmp_ne_u64 vcc, s[6:7], %s'%v(244+2*i,2)); e.nop(4); e('s_cbranch_vccnz L_r'+name)
    e('s_branch L_q'+name); e.label('L_r'+name)
    e('s_sleep 4'); e('s_add_u32 %s, %s, 1'%(SCNT,SCNT)); e('s_cmp_lt_u32 %s, 0x40000'%SCNT); e('s_cbranch_scc1 L_p'+name); e.label('L_q'+name)
KF,QF,VF=16,52,56
KV=49152
def check(name,base,n):
    e('s_waitcnt vmcnt(%d)'%n); e('v_cmp_ne_u64 vcc, s[6:7], v[244:245]'); e.nop(4); e('s_cbranch_vccz L_q'+name); poll(name,6,base)
def p1():
    e('s_lshl_b32 %s, %s, 4'%(T0,RB)); e('s_sub_u32 %s, %s, 32'%(T0,T0)); e('v_min_u32 v6, 47, v1'); e('v_add_u32 v6, %s, v6'%T0); e('v_max_i32 v6, 0, v6'); e('v_lshlrev_b32 v6, 3, v6')
    e('s_mov_b32 %s, %d'%(T3,FL)); e('buffer_load_dwordx2 v[244:245], v6, %s, %s offen sc1'%(WS,T3))
def kvld():
    check('1',FL,0)
    e('s_lshl_b32 %s, %s, 21'%(T1,KH)); e('s_lshl_b32 %s, %s, 11'%(T0,CG)); e('s_add_u32 %s, %s, %s'%(T1,T1,T0)); e('s_add_u32 %s, %s, %d'%(T1,T1,KB))
    e('s_mul_i32 %s, %s, 24576'%(T2,KH)); e('s_lshl_b32 %s, %s, 11'%(T0,TG)); e('s_add_u32 %s, %s, %s'%(T2,T2,T0))
    for i in range(3):
        e('s_sub_i32 %s, %s, %d'%(T3,QBI,4*i)); e('s_max_i32 %s, %s, 0'%(T3,T3)); e('s_lshl_b32 %s, %s, 15'%(T3,T3)); e('s_add_u32 %s, %s, %s'%(T3,T3,T1))
        e('s_add_u32 m0, %s, %d'%(T2,KV+(2-i)*8192))
        for c in range(2): e('buffer_load_dwordx4 v14, %s, %s offen offset:%d sc1 lds'%(WS,T3,1024*c))
def qld():
    e('s_lshl_b32 %s, %s, 1'%(T1,CG)); e('s_add_u32 %s, %s, %s'%(T1,T1,KH)); e('s_lshl_b32 %s, %s, 10'%(T1,T1))
    e('s_lshl_b32 %s, %s, 15'%(T0,QBI)); e('s_add_u32 %s, %s, %s'%(T3,T0,T1)); e('buffer_load_dwordx4 %s, v14, %s, %s offen sc1'%(v(QF,4),WS,T3))
def sig(off,val,lbl):
    e('v_mov_b32 v3, %d'%(CNT+off)); e('v_mov_b32 v10, 1'); e('s_mov_b64 exec, 1'); e('ds_add_rtn_u32 v10, v3, v10'); e('s_waitcnt lgkmcnt(0)'); e('s_mov_b64 exec, -1')
    e('v_readfirstlane_b32 %s, v10'%T0); e('s_cmp_lg_u32 %s, 7'%T0); e('s_cbranch_scc1 L_'+lbl); flag(val); e.label('L_'+lbl)
REG=WQR+W1R
lq=[]
def xr(s): xread(s); lq.extend([('x',s)]*2)
def wr(s): wread(REG,s); lq.extend([('w',s)]*6)
def lwait(tags):
    idx=[i for i,t in enumerate(lq) if t in tags]
    if idx:
        n=len(lq)-1-max(idx); e('s_waitcnt lgkmcnt(%d)'%min(n,15)); del lq[:max(idx)+1]
xr(0); wr(0); xr(1); wr(1)
if opt['pr']: e('s_cmp_eq_u32 %s, 0'%KH); e('s_cbranch_scc1 L_pr'); e('s_setprio 1'); e.label('L_pr')
fill=[t for i in range(8,16) for t in norm(i,208)]
S,NM,MD,MF,O,P=80,128,144,204,160,224
fil2=['v_and_b32 v4, 31, v1','v_lshrrev_b32 v5, 5, v1','v_lshlrev_b32 v5, 2, v5','v_sub_u32 v4, v4, v5','v_mov_b32 v5, 0xf149f2ca']
for r in range(16): fil2+=['v_cmp_le_i32 vcc, %d, v4'%((r&3)+8*(r>>2)),'v_mov_b32 v%d, %s'%(VF+r,ONES),'v_cndmask_b32 v%d, v5, 0, vcc'%(MD+r),'v_cndmask_b32 v%d, 0, v5, vcc'%(MF+r)]
XS={0:[2,3,4],1:[5,6,7],6:[8,9],7:[10,11],8:[12],9:[13],10:[14],11:[15]}
for s in range(32):
    q=s<16; A=ACC if q else 220
    if s in (1,2,4,6,8,10,14): stamp(2)
    if s==2: lwait([('x',7)]); bar(nq[0]-6+TL)
    if s==6: lwait([('s',15)]); bar(3); assert nq[0]==12
    if s==10: bar(3)
    if s==14: lwait([('x',15)]); bar(3); e('v_mov_b32 v3, %d'%CNT); e('v_mov_b32 v10, 0'); e('ds_write_b32 v3, v10'); e('ds_write_b32 v3, v10 offset:4'); e('ds_write_b32 v3, v10 offset:8'); lq.extend([0,0,0])
    if s==18: bar(7)
    if s==opt['fs']<22: e('s_waitcnt vmcnt(%d)'%(3 if s>19 else 2)); sig(8,0,'f1')
    if s==22: bar(3+10-len(pfl))
    if s==22==opt['fs']: e('s_cmp_lg_u32 %s, 0'%W); e('s_cbranch_scc1 L_f1'); flag(0); e.label('L_f1')
    if s==26: bar(10-len(pfl))
    lwait([('w',s),('x',s)])
    if s<30 and not opt['il']: wr(s+2)
    if s<6 and not opt['il']: wnext()
    dm={6:(0,0),7:(0,1),8:(0,2),10:(1,0),11:(1,1),12:(1,2),14:(2,0),15:(2,1),16:(2,2),18:(3,1),19:(3,2)}
    if s in dm and not opt['il']: wdma(0,*dm[s])
    if s==opt['pe']: pfinit()
    if s==opt['p1']: p1()
    if s==opt['p1']+2: kvld()
    xs=list(XS.get(s,[]))
    for j in range(3):
        for T in range(2):
            a,b=v(WF+(s%3)*12+4*j,4),v(XF+8*(s&15)+4*T,4)
            if q and j==2: a,b=b,a
            e('v_mfma_f32_16x16x32_bf16 %s, %s, %s, %s'%(v(A+8*j+4*T,4),a,b,v(A+8*j+4*T,4) if s&15 else '0'))
            if opt['il']:
                if s<30: wread(REG,s+2,2*j+T); lq.append(('w',s+2))
                if j==1 and T==0:
                    if s<6: wnext()
                    if s in dm: wdma(0,*dm[s])
                    if s>=opt['pe'] and len(pfl)>10-opt['pn']: pf1()
            if s<4:
                for k in range(3 if j*2+T<4 else 2): e(fill.pop(0))
            if s>=24:
                for k in range(2):
                    if fil2: e(fil2.pop(0))
            if T==0 and xs: xr(xs.pop(0))
            if 2<=s<6 and T==1 and j<2: i=8+2*(s-2)+j; xwrite(i); lq.append(('s',i))
    if s==16:
        A=ACC
        e('s_and_b32 %s, %s, 1'%(T0,CG)); e('s_cmp_eq_u32 %s, 0'%T0); e('s_cselect_b32 %s, 0x3eb8aa3b, 1.0'%T1)
        for r in range(16): e('v_mul_f32 v%d, %s, v%d'%(ACC+r,T1,ACC+r))
        e('s_lshl_b32 %s, %s, 21'%(T0,T0)); e('s_lshl_b32 %s, %s, 15'%(T1,QBI)); e('s_add_u32 %s, %s, %s'%(T0,T0,T1))
        e('s_lshr_b32 %s, %s, 1'%(T3,CG)); e('s_lshl_b32 %s, %s, 2'%(T3,T3)); e('s_add_u32 %s, %s, %s'%(T3,T3,KH)); e('s_lshl_b32 %s, %s, 10'%(T3,T3)); e('s_add_u32 %s, %s, %s'%(T0,T0,T3))
        e('s_lshl_b32 %s, %s, 1'%(T3,CG)); e('s_add_u32 %s, %s, %s'%(T3,T3,KH)); e('s_lshl_b32 %s, %s, 10'%(T3,T3)); e('s_add_u32 %s, %s, %s'%(T1,T1,T3)); e('s_add_u32 %s, %s, %d'%(T1,T1,VB))
        for j in range(3):
            pack(j)
            if j<2: e('buffer_store_dwordx4 %s, v15, %s, %s offen offset:%d sc1'%(v(PK+4*j,4),WS,T0,2048*j))
            else: e('buffer_store_dwordx4 %s, v14, %s, %s offen sc1'%(v(PK+4*j,4),WS,T1))
        wdma(0,3,0)
    if s==15: stamp(3)
stamp(3)
if opt['p1']>=30: kvld()
qld()
A=220; EX=180; PK=168
e('s_mul_i32 %s, %s, 86'%(T0,QBI)); e('s_lshr_b32 %s, %s, 5'%(T1,W1A)); e('s_add_u32 %s, %s, %s'%(T0,T0,T1)); e('s_add_u32 %s, %s, %s'%(T0,T0,KH)); e('s_lshl_b32 %s, %s, 10'%(T0,T0)); e('s_add_u32 %s, %s, %d'%(T0,T0,HB))
e('s_mov_b32 s4, 0xbfb8aa3b'); e('s_mov_b32 s5, 0xbfb8aa3b')
for j in range(3):
    for r in range(0,8,2): e('v_pk_mul_f32 %s, %s, s[4:5]'%(v(EX+r,2),v(A+8*j+r,2)))
    for r in range(8): e('v_exp_f32 v%d, v%d'%(EX+r,EX+r))
    for r in range(0,8,2): e('v_pk_add_f32 %s, %s, 1.0 op_sel_hi:[1,0]'%(v(EX+r,2),v(EX+r,2)))
    for r in range(8): e('v_rcp_f32 v%d, v%d'%(EX+r,EX+r))
    for r in range(0,8,2): e('v_pk_mul_f32 %s, %s, %s'%(v(A+8*j+r,2),v(A+8*j+r,2),v(EX+r,2)))
    pack(j)
    if j==2: e('s_add_u32 %s, %s, 4096'%(T0,T0))
    e('buffer_store_dwordx4 %s, v15, %s, %s offen offset:%d sc1'%(v(PK+4*j,4),WS,T0,2048*(j&1)))
stamp()
e('v_lshrrev_b32 v3, 2, v1'); e('v_and_b32 v10, 3, v1'); e('v_lshlrev_b32 v10, 4, v10'); e('v_lshl_add_u32 v8, v3, 10, v10')
e('s_mul_i32 %s, %s, 22'%(T5,KQ)); e('s_cmp_eq_u32 %s, 3'%KQ); e('s_subb_u32 %s, %s, 0'%(T5,T5))
e('s_add_u32 %s, %s, %s'%(T2,T5,TG2)); e('s_lshl_b32 %s, %s, 14'%(T2,T2)); e('s_lshl_b32 %s, %s, 7'%(T0,CB)); e('s_add_u32 %s, %s, %s'%(T2,T2,T0))
e('s_lshl_b32 %s, %s, 11'%(T4,KQ)); e('s_lshl_b32 %s, %s, 13'%(T0,TG2)); e('s_add_u32 %s, %s, %s'%(T4,T4,T0))
def slot(u): return ((u+12)%18)*8192
def w3dma(u):
    if u==22:
        e('s_lshl_b32 %s, %s, 3'%(T2,KQ)); e('s_add_u32 %s, %s, %s'%(T2,T2,TG2)); e('s_lshl_b32 %s, %s, 14'%(T2,T2)); e('s_lshl_b32 %s, %s, 7'%(T0,CB)); e('s_add_u32 %s, %s, %s'%(T2,T2,T0))
    for j in range(2):
        e('s_add_u32 m0, %s, %d'%(T4,slot(u)+960*j)); e('buffer_load_dwordx4 v8, %s, %s offen offset:%d lds'%(W2 if u<22 else WO,T2,64*j))
    e('s_add_u32 %s, %s, 32768'%(T2,T2))
def smf(d,c): e('v_mfma_f32_32x32x16_bf16 %s, %s, %s, %s'%(v(S+16*(d%3),16),v(KF+4*d,4),v(QF,4),c))
e('s_lshl_b32 %s, %s, 1'%(T0,TG)); e('s_add_u32 %s, %s, %s'%(T0,T0,KH)); e('s_lshl_b32 %s, %s, 10'%(T0,T0)); e('s_add_u32 %s, %s, %d'%(T0,T0,KV)); e('v_add_u32 v7, %s, v14'%T0)
e('v_lshrrev_b32 v3, 5, v1'); e('v_and_b32 v10, 15, v1'); e('v_lshlrev_b32 v10, 4, v10'); e('v_lshl_add_u32 v10, v3, 8, v10'); e('s_add_u32 %s, %s, 24576'%(T0,T0)); e('v_add_u32 v9, %s, v10'%T0)
bar(3); stamp()
for d in range(9): e('ds_read_b128 %s, v7 offset:%d'%(v(KF+4*d,4),(8-d)*2048))
def vread(d):
    e('s_mov_b32 exec_lo, 0xffff'); e('s_mov_b32 exec_hi, 0xffff')
    for c in range(2): e('ds_read_b128 %s, v9 offset:%d'%(v(VF+8*(d&1)+4*c,4),(8-d)*2048+512*c))
    e('s_mov_b64 exec, -1')
n3=min(len(pfl),opt['pfp'])
for k in range(n3): pf1()
for u in range(0,2*opt['w0'],2): w3dma(u)
e('s_waitcnt lgkmcnt(0)')
c1=lambda d: v(MD,16) if d==0 else v(MF,16) if d==8 else '0'
smf(0,c1(0)); smf(1,c1(1))
for d in range(9):
    if d+2<9: smf(d+2,c1(d+2))
    b=S+16*(d%3)
    if d==0: e('v_max_f32 v4, v%d, v%d'%(b,b+1)); e('v_max_f32 v5, v%d, v%d'%(b+2,b+3))
    else: e('v_max3_f32 v4, v%d, v%d, v4'%(b,b+1)); e('v_max3_f32 v5, v%d, v%d, v5'%(b+2,b+3))
    for r in range(4,16,2): e('v_max3_f32 v%d, v%d, v%d, v%d'%(4+((r>>1)&1),b+r,b+r+1,4+((r>>1)&1)))
    if d<8: e('s_cmp_eq_u32 %s, %d'%(QBI,d)); e('s_cbranch_scc1 L_a1')
e.label('L_a1')
e('v_max_f32 v4, v4, v5'); e('v_mov_b32 v5, v4'); e('v_permlane32_swap_b32 v4, v5'); e('v_max_f32 v4, v4, v5')
e.nop(8)
for r in range(16): e('v_sub_f32 v%d, v%d, v4'%(MD+r,MD+r))
for r in range(16): e('v_sub_f32 v%d, 0, v4'%(NM+r))
for r in range(16): e('v_sub_f32 v%d, v%d, v4'%(MF+r,MF+r))
e('s_waitcnt vmcnt(%d)'%(2*opt['w0']+n3))
sig(0,1,'f2')
e('s_lshr_b32 %s, %s, 1'%(T0,RB2)); e('s_lshl_b32 %s, %s, 7'%(T0,T0)); e('v_and_b32 v6, 15, v1'); e('v_lshlrev_b32 v6, 3, v6'); e('v_add_u32 v6, %s, v6'%T0)
e('s_mov_b32 %s, %d'%(T1,FL+2048))
vread(0)
c2=lambda d: v(MD,16) if d==0 else v(MF,16) if d==8 else v(NM,16)
smf(0,c2(0))
for d in range(9):
    if d<8:
        e('s_cmp_lg_u32 %s, %d'%(QBI,d)); e('s_cbranch_scc1 L_m%d'%d)
        for r in range(16): e('v_mov_b32 v%d, 0xf149f2ca'%(NM+r)); e('v_mov_b32 v%d, 0xf149f2ca'%(MF+r))
        e.label('L_m%d'%d)
        smf(d+1,c2(d+1)); vread(d+1)
    if d+opt['w0']<6: w3dma(2*(d+opt['w0']))
    pf1()
    if d==8: e('buffer_load_dwordx2 v[244:245], v6, %s, %s offen sc1'%(WS,T1))
    b=S+16*(d%3); p=P+8*(d&1)
    for c in range(2):
        for r in range(8): e('v_exp_f32 v%d, v%d'%(b+8*c+r,b+8*c+r))
        for r in range(4): e('v_cvt_pk_bf16_f32 v%d, v%d, v%d'%(p+4*c+r,b+8*c+2*r,b+8*c+2*r+1))
    e('s_waitcnt lgkmcnt(%d)'%(2 if d<8 else 0))
    for c in range(2): e('v_mfma_f32_32x32x16_bf16 %s, %s, %s, %s'%(v(O,16),v(VF+8*(d&1)+4*c,4),v(p+4*c,4),v(O,16) if d+c else '0'))

e('v_rcp_f32 v4, v%d'%(O+8))
for r in range(8): e('v_mul_f32 v%d, v%d, v4'%(O+r,O+r))
for r in range(4): e('v_cvt_pk_bf16_f32 v%d, v%d, v%d'%(192+r,O+2*r,O+2*r+1))
stamp()
e('s_lshl_b32 %s, %s, 5'%(T0,QBI)); e('s_lshl_b32 %s, %s, 1'%(T1,CG)); e('s_add_u32 %s, %s, %s'%(T0,T0,T1)); e('s_add_u32 %s, %s, %s'%(T0,T0,KH)); e('s_lshl_b32 %s, %s, 10'%(T0,T0)); e('s_add_u32 %s, %s, %d'%(T0,T0,OB))
e('buffer_store_dwordx4 %s, v14, %s, %s offen sc1'%(v(192,4),WS,T0))
HF,A3,W3,XR=16,136,168,204
HS,OS=WQA,WQB
e('s_lshl_b32 %s, %s, 1'%(T1,RB2)); e('s_add_u32 %s, %s, %s'%(T1,T1,TG2))
e('s_mul_i32 %s, %s, 86'%(HS,T1)); e('s_add_u32 %s, %s, %s'%(HS,HS,T5)); e('s_lshl_b32 %s, %s, 10'%(HS,HS)); e('s_add_u32 %s, %s, %d'%(HS,HS,HB))
e('s_lshl_b32 %s, %s, 5'%(OS,T1)); e('s_lshl_b32 %s, %s, 3'%(T3,KQ)); e('s_add_u32 %s, %s, %s'%(OS,OS,T3)); e('s_lshl_b32 %s, %s, 10'%(OS,OS)); e('s_add_u32 %s, %s, %d'%(OS,OS,OB))
if opt['fin']==0: e('v_lshrrev_b32 v3, 3, v0'); e('v_and_b32 v10, 7, v0'); e('v_lshlrev_b32 v10, 4, v10'); e('v_lshl_add_u32 v9, v3, 10, v10')
else: e('v_and_b32 v3, 31, v1'); e('v_lshrrev_b32 v10, 5, v1'); e('v_lshlrev_b32 v10, 4, v10'); e('v_lshl_add_u32 v9, v3, 10, v10'); e('s_lshl_b32 %s, %s, 15'%(T0,TG2)); e('s_lshl_b32 %s, %s, 5'%(T3,KQ)); e('s_add_u32 %s, %s, %s'%(T0,T0,T3)); e('v_add_u32 v9, %s, v9'%T0)
e('v_lshrrev_b32 v10, 5, v1'); e('v_bfe_u32 v3, v1, 2, 2'); e('v_lshl_add_u32 v3, v10, 2, v3'); e('v_lshlrev_b32 v3, 6, v3')
e('v_and_b32 v11, 16, v1'); e('v_lshl_add_u32 v3, v11, 1, v3'); e('v_and_b32 v11, 3, v1'); e('v_lshl_add_u32 v3, v11, 3, v3')
e('s_lshl_b32 %s, %s, 11'%(T0,KQ)); e('v_add_u32 v11, %s, v3'%T0); e('v_add_u32 v12, 49152, v11'); e('v_add_u32 v13, 98304, v11')
check('2',FL+2048,1); stamp()
vq=['o']
def vw(tags,extra=''):
    idx=[i for i,t in enumerate(vq) if t in tags]
    if idx: n=len(vq)-1-max(idx); del vq[:max(idx)+1]; e('s_waitcnt vmcnt(%d) %s'%(n,extra))
    elif extra: e('s_waitcnt '+extra)
def ald(u):
    k=u if u<22 else u-22; r=HS if u<22 else OS
    e('buffer_load_dwordx4 %s, v14, %s, %s offen offset:%d sc1'%(v(HF+4*u,4),WS,r,1024*(k&3))); vq.append(('a',u))
    if k&3==3: e('s_add_u32 %s, %s, 4096'%(r,r))
def w3d(u): w3dma(u); vq.extend([('w',u)]*2)
LA=opt['la']
for u in range(LA): ald(u)
e('s_barrier'); stamp()
def w3read(u):
    a=slot(u); b=VR0+a//49152; a%=49152
    for j in range(2):
        for jj in range(2): e('ds_read_b64_tr_b16 %s, v%d offset:%d'%(v(W3+(u%3)*8+4*j+2*jj,2),b,a+1024*j+512*jj))
w3read(0); w3read(1)
WD={1:12,3:14,5:16,6:18,8:20,10:22,16:24,17:26,18:28}
na=[LA]; PU=opt['pu']
for u in range(30):
    if u==6: e('s_barrier')
    if u==10: vw([('w',16)]); e('s_barrier')
    if u==16: vw([('w',22)]); e('s_barrier'); stamp()
    if u==22: vw([('w',28)]); e('s_barrier'); stamp()
    if u==26 and opt['fin']: e('s_barrier')
    if u==29:
        vw(['x'])
        if opt['fin']:
            for r in range(2): e('v_permlane32_swap_b32 v%d, v%d'%(XR+r,XR+2+r))
    if u==PU-2: e('s_mov_b32 %s, %d'%(T1,FL+4096)); e('buffer_load_dwordx2 v[244:245], v6, %s, %s offen sc1'%(WS,T1)); vq.append('p')
    if u==PU: n=len(vq)-1-vq.index('p'); del vq[:vq.index('p')+1]; check('3',FL+4096,n)
    if u+2<30: w3read(u+2)
    if u in WD: w3d(WD[u])
    for k in range(2 if u>=PU else 1):
        if na[0]<(30 if u>=PU else 22): ald(na[0]); na[0]+=1
    if u==20:
        e('s_lshl_b32 %s, %s, 16'%(T3,RB2)); e('s_lshl_b32 %s, %s, 7'%(T0,CB)); e('s_add_u32 %s, %s, %s'%(T3,T3,T0))
        e('buffer_load_dwordx4 %s, v9, %s, %s offen'%(v(XR,4),X,T3)); vq.append('x')
    lg=8 if u+2<30 else 4 if u+1<30 else 0
    vw([('a',u)],'lgkmcnt(%d)'%lg)
    if u==21: e('s_cmp_ge_u32 %s, 2'%KQ); e('s_cbranch_scc1 L_s21')
    for j in range(2): e('v_mfma_f32_32x32x16_bf16 %s, %s, %s, %s'%(v(A3+16*j,16),v(W3+(u%3)*8+4*j,4),v(HF+4*u,4),v(A3+16*j,16) if u else '0'))
    if u==21: e.label('L_s21')
    if u==0: sig(4,2,'f3')
    if u==2:
        e('s_or_b32 %s, %s, %s'%(T0,SID,W)); e('s_cmp_lg_u32 %s, 0'%T0); e('s_cbranch_scc1 L_noep')
        e('v_lshlrev_b32 v7, 3, v1'); poll('e',7,FL,4)
        e('v_mov_b32 v4, s6'); e('v_mov_b32 v5, s7'); e('v_mov_b32 v3, 0'); e('s_mov_b32 %s, %d'%(T0,EP)); e('s_mov_b64 exec, 1'); e('buffer_store_dwordx2 v[4:5], v3, %s, %s offen sc1'%(WS,T0)); e('s_mov_b64 exec, -1')
        e.label('L_noep')
stamp()
if opt['fin']==0:
    e('s_barrier')
    e('s_mul_i32 %s, %s, 17408'%(T0,KQ)); e('s_mul_i32 %s, %s, 8704'%(T3,TG2)); e('s_add_u32 %s, %s, %s'%(T0,T0,T3))
    e('v_and_b32 v3, 31, v1'); e('v_mul_u32_u24 v3, 272, v3'); e('v_lshrrev_b32 v10, 5, v1'); e('v_lshl_add_u32 v3, v10, 4, v3'); e('v_add_u32 v3, %s, v3'%T0)
    for j in range(2):
        for q in range(4): e('ds_write_b128 v3, %s offset:%d'%(v(A3+16*j+4*q,4),128*j+32*q))
    e('v_lshrrev_b32 v3, 3, v0'); e('v_mul_u32_u24 v3, 272, v3'); e('v_and_b32 v10, 7, v0'); e('v_lshl_add_u32 v3, v10, 5, v3')
    for r in range(4): e('v_lshlrev_b32 v%d, 16, v%d'%(64+2*r,XR+r)); e('v_and_b32 v%d, 0xffff0000, v%d'%(65+2*r,XR+r))
    e('s_waitcnt lgkmcnt(0)'); e('s_barrier')
    for k in range(4):
        for i in range(2): e('ds_read_b128 %s, v3 offset:%d'%(v(16+8*k+4*i,4),17408*k+16*i))
    for k in range(4):
        e('s_waitcnt lgkmcnt(%d)'%(6-2*k))
        for r in range(8): e('v_add_f32 v%d, v%d, v%d'%(64+r,64+r,16+8*k+r))
    for r in range(4): e('v_cvt_pk_bf16_f32 v%d, v%d, v%d'%(72+r,64+2*r,65+2*r))
    e('s_lshl_b32 %s, %s, 16'%(T3,RB2)); e('s_lshl_b32 %s, %s, 7'%(T0,CB)); e('s_add_u32 %s, %s, %s'%(T3,T3,T0))
    e('buffer_store_dwordx4 v[72:75], v9, %s, %s offen'%(OUT,T3))
else:
    FB=98304
    e('s_lshl_b32 %s, %s, 11'%(T0,W)); e('s_add_u32 %s, %s, %d'%(T0,T0,FB)); e('v_add_u32 v3, %s, v14'%T0); e.nop(16)
    for k in range(4):
        e('s_cmp_eq_u32 %s, %d'%(KQ,k)); e('s_cbranch_scc1 L_o%d'%k)
        for i in range(2): e('ds_write_b128 v3, %s offset:%d'%(v(A3+8*k+4*i,4),16384*k+1024*i))
        e('s_branch L_n%d'%k); e.label('L_o%d'%k)
        for r in range(4):
            e('v_lshlrev_b32 v%d, 16, v%d'%(64+2*r,XR+r)); e('v_and_b32 v%d, 0xffff0000, v%d'%(65+2*r,XR+r))
            e('v_pk_add_f32 %s, %s, %s'%(v(64+2*r,2),v(64+2*r,2),v(A3+8*k+2*r,2)))
        e.label('L_n%d'%k)
    e('s_lshl_b32 %s, %s, 14'%(T0,KQ)); e('s_add_u32 %s, %s, %d'%(T0,T0,FB))
    for k in range(1,4):
        e('s_add_u32 %s, %s, %d'%(T1,W,2*k)); e('s_and_b32 %s, %s, 7'%(T1,T1)); e('s_lshl_b32 %s, %s, 11'%(T1,T1)); e('s_add_u32 %s, %s, %s'%(T1,T1,T0)); e('v_add_u32 v%d, %s, v14'%(3+k,T1))
    e('s_waitcnt lgkmcnt(0)'); e('s_barrier')
    for k in range(1,4):
        for i in range(2): e('ds_read_b128 %s, v%d offset:%d'%(v(16+8*k+4*i,4),3+k,1024*i))
    for k in range(1,4):
        e('s_waitcnt lgkmcnt(%d)'%(6-2*k))
        for r in range(4): e('v_pk_add_f32 %s, %s, %s'%(v(64+2*r,2),v(64+2*r,2),v(16+8*k+2*r,2)))
    for r in range(4): e('v_cvt_pk_bf16_f32 v%d, v%d, v%d'%(72+r,64+2*r,65+2*r))
    for r in range(2): e('v_permlane32_swap_b32 v%d, v%d'%(72+r,74+r))
    e('s_lshl_b32 %s, %s, 16'%(T3,RB2)); e('s_lshl_b32 %s, %s, 7'%(T0,CB)); e('s_add_u32 %s, %s, %s'%(T3,T3,T0))
    e('buffer_store_dwordx4 v[72:75], v9, %s, %s offen %s'%(OUT,T3,['','sc1','nt','sc0 sc1'][opt['ost']]))
if opt['stamp']:
    stamp(3); e('s_memrealtime s[62:63]'); e('s_waitcnt lgkmcnt(0)')
    e('s_lshl_b32 %s, s2, 3'%T0); e('s_add_u32 %s, %s, %s'%(T0,T0,W)); e('s_lshl_b32 %s, %s, 7'%(T0,T0)); e('s_add_u32 %s, %s, %d'%(T0,T0,15<<20))
    e('v_mov_b32 v3, 0'); e('s_mov_b64 exec, 1')
    for i in range(nst[0]+2):
        e('v_mov_b32 v10, s%d'%(60+2*i)); e('buffer_store_dword v10, v3, %s, %s offen offset:%d'%(WS,T0,4*i))
e.label('L_end'); e('s_endpgm')
hdr=open('cdna_kernels/%s.s.ref'%NAME).read().split('; Override')[0]
txt=hdr+'''; @launch grid=(256,1,1) block=(512,1,1) lds=163840
.amdgcn_target "amdgcn-amd-amdhsa--gfx950"
.text
.globl %s_kernel
.p2align 8
.type %s_kernel,@function
%s_kernel:
'''%(NAME,NAME,NAME)+e.text()+'''.section .rodata,"a"
.p2align 6
.amdhsa_kernel %s_kernel
  .amdhsa_next_free_vgpr 256
  .amdhsa_next_free_sgpr 102
  .amdhsa_accum_offset 256
  .amdhsa_group_segment_fixed_size 0
  .amdhsa_kernarg_size 72
  .amdhsa_user_sgpr_count 2
  .amdhsa_user_sgpr_kernarg_segment_ptr 1
  .amdhsa_system_sgpr_workgroup_id_x 1
.end_amdhsa_kernel
'''%NAME
open(sys.argv[1],'w').write(txt)
```

```python
import sys
from emit import E
NAME='parallel_sum__sliding_block__dense_activation_silu__prompt'
opt=dict(stamp=0,map=1,rot=1,pf=4,wsp=16,il=1,pr=1,fs=20,wpre=6,w0=0,la=6,pu=19,pfp=0,pe=21,pn=7,cp=1,tl=0,sg=0,nsc=0,hp=0,p1=30,fin=1,ms=1,ost=0)
for a in sys.argv[2:]:
    k,v=a.split('='); opt[k]=int(v)
e=E()
QB,KB,VB,OB,HB=0,2<<20,4<<20,6<<20,8<<20
X,WQ,WO,W1,W2,OUT,DBG,WS=['s[%d:%d]'%(8+4*i,11+4*i) for i in range(8)]
RB,CG,W,TG,KH,ONES,QBI,T0,T1,T2,T3,RB2,CB,KQ,TG2,SID,T4,T5,SCNT,ROT,TGS,WQA,WQB,W1A='s40 s41 s42 s43 s44 s45 s46 s47 s48 s49 s50 s51 s52 s53 s54 s55 s56 s57 s58 s59 s3 s98 s99 s100'.split()
EP=14<<20; FL=EP+4096
def v(a,n=1): return 'v%d'%a if n==1 else 'v[%d:%d]'%(a,a+n-1)
nst=[0]
def stamp(l=1):
    if opt['stamp']&l and nst[0]<16:
        i=nst[0]; nst[0]+=1
        e('s_memtime s[%d:%d]'%(64+2*i,65+2*i)); e('s_waitcnt lgkmcnt(0)')
VWQ,VW1,VR0=8,9,11
XF,ACC,WF,RAW=16,144,168,192
CNT=160768; XR=98304
e('s_cmp_ge_u32 s2, 256'); e('s_cbranch_scc1 L_end')
if opt['stamp']: e('s_memrealtime s[60:61]'); e('s_memtime s[96:97]'); e('s_waitcnt lgkmcnt(0)'); e('s_mov_b32 s101, s96')
e('s_load_dwordx16 s[64:79], s[0:1], 0'); e('s_load_dwordx2 s[80:81], s[0:1], 64')
e('v_lshrrev_b32 v3, 6, v0'); e('v_and_b32 v1, 63, v0'); e('v_readfirstlane_b32 %s, v3'%W)
e('s_and_b32 %s, s2, 7'%T0); e('s_lshr_b32 %s, s2, 3'%T1)
if opt['cp']:
    e('s_getpc_b64 s[4:5]'); e.label('L_pc')
    e('v_lshl_add_u32 v4, %s, 3, v3'%T1); e('v_min_u32 v4, (L_end-L_pc)>>7, v4'); e('v_lshlrev_b32 v4, 7, v4'); e('v_mov_b32 v5, s5')
    e('v_add_co_u32 v4, vcc, s4, v4'); e('v_addc_co_u32 v5, vcc, 0, v5, vcc'); e('global_load_dword v2, v[4:5], off'); e.nop(2)
if opt['map']==0:
    e('s_lshr_b32 %s, %s, 4'%(RB,T1)); e('s_lshl_b32 %s, %s, 1'%(T2,T0)); e('s_add_u32 %s, %s, %s'%(RB,RB,T2)); e('s_and_b32 %s, %s, 15'%(CG,T1))
elif opt['map']==2:
    e('s_lshr_b32 %s, %s, 2'%(RB,T1)); e('s_lshr_b32 %s, %s, 2'%(T2,T0)); e('s_lshl_b32 %s, %s, 3'%(T2,T2)); e('s_add_u32 %s, %s, %s'%(RB,RB,T2))
    e('s_and_b32 %s, %s, 3'%(CG,T1)); e('s_and_b32 %s, %s, 3'%(T2,T0)); e('s_lshl_b32 %s, %s, 2'%(T2,T2)); e('s_add_u32 %s, %s, %s'%(CG,CG,T2))
else:
    e('s_lshr_b32 %s, %s, 3'%(RB,T1)); e('s_lshr_b32 %s, %s, 1'%(T2,T0)); e('s_lshl_b32 %s, %s, 2'%(T2,T2)); e('s_add_u32 %s, %s, %s'%(RB,RB,T2))
    e('s_and_b32 %s, %s, 7'%(CG,T1)); e('s_and_b32 %s, %s, 1'%(T2,T0)); e('s_lshl_b32 %s, %s, 3'%(T2,T2)); e('s_add_u32 %s, %s, %s'%(CG,CG,T2))
e('s_lshr_b32 %s, %s, 3'%(RB2,T1)); e('s_lshl_b32 %s, %s, 2'%(T2,T0)); e('s_add_u32 %s, %s, %s'%(RB2,RB2,T2)); e('s_and_b32 %s, %s, 7'%(CB,T1))
e('s_lshl_b32 %s, %s, 4'%(SID,RB)); e('s_add_u32 %s, %s, %s'%(SID,SID,CG))
e('s_and_b32 %s, %s, 3'%(TG,W)); e('s_lshr_b32 %s, %s, 2'%(KH,W)); e('s_and_b32 %s, %s, 1'%(TG2,W)); e('s_lshr_b32 %s, %s, 1'%(KQ,W))
e('s_lshl_b32 %s, %s, 2'%(QBI,RB)); e('s_add_u32 %s, %s, %s'%(QBI,QBI,TG)); e('s_mov_b32 %s, 0x3f803f80'%ONES)
if opt['rot']: e('s_lshl_b32 %s, %s, 1'%(ROT,RB)); e('s_add_u32 %s, %s, %s'%(ROT,ROT,CG)); e('s_and_b32 %s, %s, 7'%(ROT,ROT))
else: e('s_mov_b32 %s, 0'%ROT)
e('v_lshrrev_b32 v3, 3, v1'); e('v_and_b32 v10, 7, v1'); e('v_lshlrev_b32 v4, 4, v10'); e('v_lshl_add_u32 v4, v3, 10, v4'); e('v_add_u32 v5, 8192, v4')
e('s_lshl_b32 %s, %s, 17'%(T0,RB)); e('s_lshl_b32 %s, %s, 14'%(T1,W)); e('s_add_u32 %s, %s, %s'%(T0,T0,T1))
e('s_waitcnt lgkmcnt(0)')
sz=[2097152,1572864,524288,1409024,1409024,2097152,256,16<<20]
src=[64,66,68,72,74,76,78,80]
def srd(i):
    b=8+4*i
    e('s_mov_b32 s%d, s%d'%(b,src[i])); e('s_mov_b32 s%d, s%d'%(b+1,src[i]+1)); e('s_mov_b32 s%d, %d'%(b+2,sz[i])); e('s_mov_b32 s%d, 0x20000'%(b+3))
srd(0)
PF=opt['pf']
e('s_mov_b32 %s, %s'%(T5,T0)); e('s_mov_b32 %s, %s'%(SCNT,ROT))
def xld(i):
    sg,rg=i>>1,i&1
    if rg==0: e('s_add_u32 %s, %s, %d'%(TGS,SCNT,sg)); e('s_and_b32 %s, %s, 7'%(TGS,TGS)); e('s_lshl_b32 %s, %s, 7'%(TGS,TGS)); e('s_add_u32 %s, %s, %s'%(TGS,TGS,T5))
    e('buffer_load_dwordx4 %s, v%d, %s, %s offen'%(v(RAW+4*i,4),4+rg,X,TGS))
for i in range(PF): xld(i)
e('s_add_u32 s4, s80, %d'%EP); e('s_addc_u32 s5, s81, 0'); e('s_load_dwordx2 s[6:7], s[4:5], 0')
for i in range(1,8): srd(i)
if opt['stamp']: e('s_mov_b32 s64, s101'); nst[0]=1
e('v_xor_b32 v10, v10, v3'); e('v_lshlrev_b32 v10, 4, v10'); e('v_lshl_add_u32 v6, v3, 9, v10'); e('s_lshl_b32 %s, %s, 13'%(T1,W)); e('s_add_u32 %s, %s, %d'%(T1,T1,XR)); e('v_add_u32 v6, %s, v6'%T1)
e('v_lshrrev_b32 v3, 2, v1'); e('v_lshrrev_b32 v10, 5, v1'); e('v_lshlrev_b32 v10, 1, v10'); e('v_xor_b32 v10, v10, v1'); e('v_and_b32 v10, 3, v10'); e('v_lshlrev_b32 v10, 4, v10')
e('v_mul_u32_u24 v8, 3072, v3'); e('v_add_u32 v8, v8, v10'); e('v_mul_u32_u24 v9, 2752, v3'); e('v_add_u32 v9, v9, v10')
e('v_lshlrev_b32 v14, 4, v1')
e('s_mul_i32 %s, %s, 3072'%(T4,W))
e('s_lshl_b32 %s, %s, 6'%(WQB,CG)); e('s_add_u32 %s, %s, 2048'%(WQB,WQB))
e('s_and_b32 %s, %s, 1'%(WQA,CG)); e('s_lshl_b32 %s, %s, 10'%(WQA,WQA)); e('s_lshr_b32 %s, %s, 1'%(T0,CG)); e('s_lshl_b32 %s, %s, 7'%(T0,T0)); e('s_add_u32 %s, %s, %s'%(WQA,WQA,T0))
e('s_mul_i32 %s, %s, 3'%(W1A,CG)); e('s_min_u32 %s, %s, 40'%(W1A,W1A)); e('s_lshl_b32 %s, %s, 6'%(W1A,W1A))
e('s_add_u32 %s, %s, %s'%(ROT,ROT,KH))
WQR=[0,24576,49152,73728]; W1R=[0,24576,98304,98304+24576]
def wdma(q,c,j):
    if j==0:
        e('s_add_u32 %s, %s, %d'%(T2,ROT,2*c)); e('s_and_b32 %s, %s, 7'%(T2,T2)); e('s_lshl_b32 %s, %s, 2'%(T2,T2)); e('s_add_u32 %s, %s, %s'%(T2,T2,TG))
        if q: e('s_mul_i32 %s, %s, 49152'%(T2,T2)); e('s_add_u32 %s, %s, %s'%(T3,T2,WQB)); e('s_add_u32 %s, %s, %s'%(T2,T2,WQA))
        else: e('s_mul_i32 %s, %s, 44032'%(T2,T2)); e('s_add_u32 %s, %s, %s'%(T2,T2,W1A))
    if q and j==2: e('s_add_u32 m0, %s, %d'%(T4,WQR[c]+2048)); e('buffer_load_dwordx4 v%d, %s, %s offen lds'%(VWQ,WQ,T3))
    elif q: e('s_add_u32 m0, %s, %d'%(T4,WQR[c]+960*j)); e('buffer_load_dwordx4 v%d, %s, %s offen offset:%d lds'%(VWQ,WQ,T2,64*j))
    else: e('s_add_u32 m0, %s, %d'%(T4,W1R[c]+960*j)); e('buffer_load_dwordx4 v%d, %s, %s offen offset:%d lds'%(VW1,W1,T2,64*j))
XA=160
e('v_and_b32 v3, 15, v1'); e('v_lshrrev_b32 v10, 4, v1'); e('v_xor_b32 v11, v10, v3'); e('v_lshlrev_b32 v11, 4, v11'); e('v_lshl_add_u32 v11, v3, 9, v11')
e('s_lshl_b32 %s, %s, 14'%(T1,TG)); e('s_add_u32 %s, %s, %d'%(T1,T1,XR)); e('v_add_u32 v7, %s, v11'%T1)
e('v_lshrrev_b32 v11, 5, v1'); e('v_lshl_add_u32 v15, v11, 4, v3'); e('v_and_b32 v12, 1, v10'); e('v_lshl_add_u32 v15, v12, 5, v15'); e('v_lshlrev_b32 v15, 4, v15')
e('v_mul_u32_u24 v11, 3072, v11'); e('v_lshl_add_u32 v11, v12, 9, v11'); e('v_xor_b32 v12, %s, v12'%KH); e('v_lshl_add_u32 v11, v12, 5, v11')
e('v_bfe_u32 v3, v1, 2, 2'); e('v_lshl_add_u32 v11, v3, 6, v11'); e('v_and_b32 v3, 3, v1'); e('v_lshl_add_u32 v11, v3, 3, v11')
e('v_add_u32 v12, 49152, v11'); e('v_add_u32 v13, 98304, v11')
ST=144
e('v_lshrrev_b32 v3, 4, v1'); e('v_bfe_u32 v10, v1, 2, 2'); e('v_cmp_eq_u32 vcc, v3, v10'); e('v_mov_b32 v3, %s'%ONES)
for r in range(4): e('v_cndmask_b32 v%d, 0, v3, vcc'%(176+r))
e('s_mov_b32 s82, 0xaaaaaaaa'); e('s_mov_b32 s83, s82'); e('s_mov_b32 s84, 0xcccccccc'); e('s_mov_b32 s85, s84')
for i in range(16):
    e('s_waitcnt vmcnt(%d)'%(PF-1))
    if i in (0,8): stamp(2)
    if i+PF<16: xld(i+PF)
    else: wdma(1,(i+PF-16)//3,(i+PF-16)%3)
    SA,QA=152+4*(i&1),160+8*(i&1)
    if opt['ms']: e('v_mfma_f32_16x16x32_bf16 %s, v[176:179], %s, %s'%(v(SA,4),v(RAW+4*i,4),v(SA,4) if i>1 else '0'))
    for r in range(4):
        u=16+8*i+2*r
        if opt['ms'] and r&1==0: e('v_mfma_f32_4x4x4_16b_bf16 %s, %s, %s, %s'%(v(QA+2*r,4),v(RAW+4*i+r,2),v(RAW+4*i+r,2),v(QA+2*r,4) if i>1 else '0'))
        e('v_lshlrev_b32 v%d, 16, v%d'%(u,RAW+4*i+r)); e('v_and_b32 v%d, 0xffff0000, v%d'%(u+1,RAW+4*i+r))
    for r in range(4):
        if opt['ms']: break
        u=v(16+8*i+2*r,2); s_=v(ST+2*(i&1),2); q_=v(ST+4+2*(i&1),2)
        if i<2 and r==0: e('v_pk_add_f32 %s, %s, 0'%(s_,u)); e('v_pk_mul_f32 %s, %s, %s'%(q_,u,u))
        else: e('v_pk_add_f32 %s, %s, %s'%(s_,s_,u)); e('v_pk_fma_f32 %s, %s, %s, %s'%(q_,u,u,q_))
stamp(2)
nq=[PF]
def wnext():
    if nq[0]<12: wdma(1,nq[0]//3,nq[0]%3); nq[0]+=1
if opt['ms']:
    e.nop(8)
    for k in range(2):
        QA=160+8*k
        e('v_pk_add_f32 %s, %s, %s'%(v(QA,2),v(QA,2),v(QA+4,2))); e('v_pk_add_f32 %s, %s, %s'%(v(QA+2,2),v(QA+2,2),v(QA+6,2)))
        e('v_cndmask_b32 v%d, v%d, v%d, s[82:83]'%(QA,QA,QA+1)); e('v_cndmask_b32 v%d, v%d, v%d, s[82:83]'%(QA+2,QA+2,QA+3))
        e('v_cndmask_b32 v%d, v%d, v%d, s[84:85]'%(ST+4+2*k,QA,QA+2))
    for k in range(2): e('v_mov_b32 v%d, v%d'%(ST+2*k,152+4*k))
    e.nop(2)
else:
    for k in range(4): e('v_add_f32 v%d, v%d, v%d'%(ST+2*k,ST+2*k,ST+2*k+1))
for dpp in ('quad_perm:[1,0,3,2]','quad_perm:[2,3,0,1]','row_half_mirror'):
    for k in range(4): e.raw('  v_add_f32_dpp v%d, v%d, v%d %s row_mask:0xf bank_mask:0xf'%(ST+2*k,ST+2*k,ST+2*k,dpp)); e.pos+=1
for k in range(2):
    m,q=ST+2*k,ST+4+2*k
    e('v_mul_f32 v%d, 0xbb000000, v%d'%(m,m)); e('v_mul_f32 v%d, 0x3b000000, v%d'%(q,q)); e('v_fma_f32 v%d, -v%d, v%d, v%d'%(q,m,m,q)); e('v_max_f32 v%d, 0, v%d'%(q,q)); e('v_add_f32 v%d, 0x3727c5ac, v%d'%(q,q))
    e('v_rsq_f32 v%d, v%d'%(q,q)); e('v_mul_f32 v%d, v%d, v%d'%(m,m,q)); e('v_mov_b32 v%d, v%d'%(q+1,q)); e('v_mov_b32 v%d, v%d'%(m+1,m))
def xwrite(i): e('ds_write_b128 v6, %s offset:%d'%(v(RAW+4*i,4),(i&1)*4096+(((i>>1)&3)^(i&1))*128))
def norm(i,ST):
    L=[]
    for r in range(4): u=v(16+8*i+2*r,2); L.append('v_pk_fma_f32 %s, %s, %s, %s'%(u,u,v(ST+4+2*(i&1),2),v(ST+2*(i&1),2)))
    for r in range(4): L.append('v_cvt_pk_bf16_f32 v%d, v%d, v%d'%(RAW+4*i+r,16+8*i+2*r,17+8*i+2*r))
    return L
for i in range(8):
    for t in norm(i,ST): e(t)
    xwrite(i)
    if i%opt['wsp']==0: wnext()
while nq[0]<opt['wpre']: wnext()
TL=2*opt['tl']
if TL:
    assert nq[0]==6
    e('v_lshrrev_b32 v3, 3, v0'); e('v_lshlrev_b32 v3, 18, v3'); e('buffer_load_dword v2, v3, %s, 0 offen sc1'%WS)
    e('s_lshl_b32 %s, %s, 16'%(T0,RB2)); e('v_mov_b32 v10, 0'); e('buffer_load_dword v2, v10, %s, %s offen sc1'%(OUT,T0))
XA=204
e('v_mov_b32 v%d, v7'%XA)
for s in range(1,4): e('v_xor_b32 v%d, %d, v7'%(XA+s,64*s))
e('s_waitcnt lgkmcnt(0)')
for r in range(8): e('v_mov_b32 v%d, v%d'%(208+r,ST+r))
e('s_mul_i32 %s, s7, 0x85ebca6b'%T0); e('s_add_u32 %s, %s, s6'%(T0,T0)); e('s_add_u32 s7, %s, 0x1234567'%T0); e('s_mul_i32 s6, s6, 0x9e3779b1'); e('s_add_u32 s6, s6, 0x7f4a7c15')
stamp(2); e('s_waitcnt vmcnt(%d)'%(nq[0]-3+TL)); e('s_barrier')
stamp(3)
def xread(s):
    for T in range(2): e('ds_read_b128 %s, v%d offset:%d'%(v(XF+8*s+4*T,4),XA+(s&3),256*((s>>2)&1)+8192*T))
def wread(reg,s,only=None):
    a=reg[s//4]+(s&3)*6144; b=VR0+a//49152; a%=49152
    for j in range(3):
        for jj in range(2):
            if only is None or only==2*j+jj: e('ds_read_b64_tr_b16 %s, v%d offset:%d'%(v(WF+(s%3)*12+4*j+2*jj,2),b,a+1024*j+256*jj))
def bar(n): e('s_waitcnt vmcnt(%d)'%n); e('s_barrier')
def flag(stage):
    e('s_mov_b64 exec, 1'); e('s_lshl_b32 %s, %s, 3'%(T0,SID)); e('s_add_u32 %s, %s, %d'%(T0,T0,FL+2048*stage)); e('v_mov_b32 v4, s6'); e('v_mov_b32 v5, s7'); e('v_mov_b32 v3, 0')
    e('buffer_store_dwordx2 v[4:5], v3, %s, %s offen sc1'%(WS,T0)); e('s_mov_b64 exec, -1')
PK=208
def pack(j):
    for T in range(2):
        for r in range(2): e('v_cvt_pk_bf16_f32 v%d, v%d, v%d'%(PK+4*j+2*T+r,A+8*j+4*T+2*r,A+8*j+4*T+2*r+1))
    for r in range(2): e('v_permlane32_swap_b32 v%d, v%d'%(PK+4*j+r,PK+4*j+2+r))
pfl=[(252,W2,k*16384,0) for k in (0,22,44,65)]+[(253,W2,k*16384,0) for k in (12,34,56,76)]+[(254,WO,0,1024*k) for k in range(2)]
def pfinit():
    e('s_lshr_b32 %s, s2, 3'%T0); e('s_lshl_b32 %s, %s, 3'%(T0,T0)); e('s_add_u32 %s, %s, %s'%(T0,T0,W)); e('v_bfrev_b32 v3, 2')
    for r,n in ((252,48),(253,40)):
        e('s_mul_i32 %s, %s, %d'%(T1,T0,16*n)); e('v_add_u32 v%d, %s, v14'%(r,T1)); e('v_cmp_gt_u32 vcc, %d, v1'%n); e('v_cndmask_b32 v%d, v3, v%d, vcc'%(r,r))
    e('s_lshl_b32 %s, %s, 11'%(T1,T0)); e('v_add_u32 v254, %s, v14'%T1)
def pf1():
    if pfl: r,b,so,o=pfl.pop(0); e('s_mov_b32 %s, %d'%(T3,so)); e('buffer_load_dwordx4 v[248:251], v%d, %s, %s offen offset:%d'%(r,b,T3,o))
def poll(name,voff,base,n=1):
    e('s_mov_b32 %s, 0'%SCNT); e('s_mov_b32 %s, %d'%(T3,base)); e.label('L_p'+name)
    for i in range(n): e('buffer_load_dwordx2 %s, v%d, %s, %s offen offset:%d sc1'%(v(244+2*i,2),voff,WS,T3,512*i))
    e('s_waitcnt vmcnt(0)')
    for i in range(n):
        e('v_cmp_ne_u64 vcc, s[6:7], %s'%v(244+2*i,2)); e.nop(4); e('s_cbranch_vccnz L_r'+name)
    e('s_branch L_q'+name); e.label('L_r'+name)
    e('s_sleep 4'); e('s_add_u32 %s, %s, 1'%(SCNT,SCNT)); e('s_cmp_lt_u32 %s, 0x40000'%SCNT); e('s_cbranch_scc1 L_p'+name); e.label('L_q'+name)
KF,QF,VF=16,52,56
KV=49152
def check(name,base,n):
    e('s_waitcnt vmcnt(%d)'%n); e('v_cmp_ne_u64 vcc, s[6:7], v[244:245]'); e.nop(4); e('s_cbranch_vccz L_q'+name); poll(name,6,base)
def p1():
    e('s_lshl_b32 %s, %s, 4'%(T0,RB)); e('s_sub_u32 %s, %s, 32'%(T0,T0)); e('v_min_u32 v6, 47, v1'); e('v_add_u32 v6, %s, v6'%T0); e('v_max_i32 v6, 0, v6'); e('v_lshlrev_b32 v6, 3, v6')
    e('s_mov_b32 %s, %d'%(T3,FL)); e('buffer_load_dwordx2 v[244:245], v6, %s, %s offen sc1'%(WS,T3))
def kvld():
    check('1',FL,0)
    e('s_lshl_b32 %s, %s, 21'%(T1,KH)); e('s_lshl_b32 %s, %s, 11'%(T0,CG)); e('s_add_u32 %s, %s, %s'%(T1,T1,T0)); e('s_add_u32 %s, %s, %d'%(T1,T1,KB))
    e('s_mul_i32 %s, %s, 24576'%(T2,KH)); e('s_lshl_b32 %s, %s, 11'%(T0,TG)); e('s_add_u32 %s, %s, %s'%(T2,T2,T0))
    for i in range(3):
        e('s_sub_i32 %s, %s, %d'%(T3,QBI,4*i)); e('s_max_i32 %s, %s, 0'%(T3,T3)); e('s_lshl_b32 %s, %s, 15'%(T3,T3)); e('s_add_u32 %s, %s, %s'%(T3,T3,T1))
        e('s_add_u32 m0, %s, %d'%(T2,KV+(2-i)*8192))
        for c in range(2): e('buffer_load_dwordx4 v14, %s, %s offen offset:%d%s lds'%(WS,T3,1024*c,'' if opt['nsc']>1 else ' sc1'))
def qld():
    e('s_lshl_b32 %s, %s, 1'%(T1,CG)); e('s_add_u32 %s, %s, %s'%(T1,T1,KH)); e('s_lshl_b32 %s, %s, 10'%(T1,T1))
    e('s_lshl_b32 %s, %s, 15'%(T0,QBI)); e('s_add_u32 %s, %s, %s'%(T3,T0,T1)); e('buffer_load_dwordx4 %s, v14, %s, %s offen sc1'%(v(QF,4),WS,T3))
def sig(off,val,lbl):
    e('v_mov_b32 v3, %d'%(CNT+off)); e('v_mov_b32 v10, 1'); e('s_mov_b64 exec, 1'); e('ds_add_rtn_u32 v10, v3, v10'); e('s_waitcnt lgkmcnt(0)'); e('s_mov_b64 exec, -1')
    e('v_readfirstlane_b32 %s, v10'%T0); e('s_cmp_lg_u32 %s, 7'%T0); e('s_cbranch_scc1 L_'+lbl); flag(val); e.label('L_'+lbl)
REG=WQR+W1R
lq=[]
def xr(s): xread(s); lq.extend([('x',s)]*2)
def wr(s): wread(REG,s); lq.extend([('w',s)]*6)
def lwait(tags):
    idx=[i for i,t in enumerate(lq) if t in tags]
    if idx:
        n=len(lq)-1-max(idx); e('s_waitcnt lgkmcnt(%d)'%min(n,15)); del lq[:max(idx)+1]
xr(0); wr(0); xr(1); wr(1)
if opt['pr']: e('s_cmp_eq_u32 %s, 0'%KH); e('s_cbranch_scc1 L_pr'); e('s_setprio 1'); e.label('L_pr')
fill=[t for i in range(8,16) for t in norm(i,208)]
S,NM,MD,MF,O,P=80,128,144,204,160,224
fil2=['v_and_b32 v4, 31, v1','v_lshrrev_b32 v5, 5, v1','v_lshlrev_b32 v5, 2, v5','v_sub_u32 v4, v4, v5','v_mov_b32 v5, 0xf149f2ca']
for r in range(16): fil2+=['v_cmp_le_i32 vcc, %d, v4'%((r&3)+8*(r>>2)),'v_mov_b32 v%d, %s'%(VF+r,ONES),'v_cndmask_b32 v%d, v5, 0, vcc'%(MD+r),'v_cndmask_b32 v%d, 0, v5, vcc'%(MF+r)]
XS={0:[2,3,4],1:[5,6,7],6:[8,9],7:[10,11],8:[12],9:[13],10:[14],11:[15]}
for s in range(32):
    q=s<16; A=ACC if q else 220
    if s in (1,2,4,6,8,10,14): stamp(2)
    if s==2: lwait([('x',7)]); bar(nq[0]-6+TL)
    if s==6: lwait([('s',15)]); bar(3); assert nq[0]==12
    if s==10: bar(3)
    if s==14: lwait([('x',15)]); bar(3); e('v_mov_b32 v3, %d'%CNT); e('v_mov_b32 v10, 0'); e('ds_write_b32 v3, v10'); e('ds_write_b32 v3, v10 offset:4'); e('ds_write_b32 v3, v10 offset:8'); lq.extend([0,0,0])
    if s==18: bar(7)
    if s==opt['fs']<22: e('s_waitcnt vmcnt(%d)'%(3 if s>19 else 2)); sig(8,0,'f1')
    if s==22: bar(3+10-len(pfl))
    if s==22==opt['fs']: e('s_cmp_lg_u32 %s, 0'%W); e('s_cbranch_scc1 L_f1'); flag(0); e.label('L_f1')
    if s==26: bar(10-len(pfl))
    lwait([('w',s),('x',s)])
    if s<30 and not opt['il']: wr(s+2)
    if s<6 and not opt['il']: wnext()
    dm={6:(0,0),7:(0,1),8:(0,2),10:(1,0),11:(1,1),12:(1,2),14:(2,0),15:(2,1),16:(2,2),18:(3,1),19:(3,2)}
    if s in dm and not opt['il']: wdma(0,*dm[s])
    if s==opt['pe']: pfinit()
    if s==opt['p1']: p1()
    if s==opt['p1']+2: kvld()
    xs=list(XS.get(s,[]))
    for j in range(3):
        for T in range(2):
            a,b=v(WF+(s%3)*12+4*j,4),v(XF+8*(s&15)+4*T,4)
            if q and j==2: a,b=b,a
            e('v_mfma_f32_16x16x32_bf16 %s, %s, %s, %s'%(v(A+8*j+4*T,4),a,b,v(A+8*j+4*T,4) if s&15 else '0'))
            if opt['il']:
                if s<30: wread(REG,s+2,2*j+T); lq.append(('w',s+2))
                if j==1 and T==0:
                    if s<6: wnext()
                    if s in dm: wdma(0,*dm[s])
                    if s>=opt['pe'] and len(pfl)>10-opt['pn']: pf1()
            if s<4:
                for k in range(3 if j*2+T<4 else 2): e(fill.pop(0))
            if s>=24:
                for k in range(2):
                    if fil2: e(fil2.pop(0))
            if T==0 and xs: xr(xs.pop(0))
            if 2<=s<6 and T==1 and j<2: i=8+2*(s-2)+j; xwrite(i); lq.append(('s',i))
    if s==16:
        A=ACC
        e('s_and_b32 %s, %s, 1'%(T0,CG)); e('s_cmp_eq_u32 %s, 0'%T0); e('s_cselect_b32 %s, 0x3eb8aa3b, 1.0'%T1)
        for r in range(16): e('v_mul_f32 v%d, %s, v%d'%(ACC+r,T1,ACC+r))
        e('s_lshl_b32 %s, %s, 21'%(T0,T0)); e('s_lshl_b32 %s, %s, 15'%(T1,QBI)); e('s_add_u32 %s, %s, %s'%(T0,T0,T1))
        e('s_lshr_b32 %s, %s, 1'%(T3,CG)); e('s_lshl_b32 %s, %s, 2'%(T3,T3)); e('s_add_u32 %s, %s, %s'%(T3,T3,KH)); e('s_lshl_b32 %s, %s, 10'%(T3,T3)); e('s_add_u32 %s, %s, %s'%(T0,T0,T3))
        e('s_lshl_b32 %s, %s, 1'%(T3,CG)); e('s_add_u32 %s, %s, %s'%(T3,T3,KH)); e('s_lshl_b32 %s, %s, 10'%(T3,T3)); e('s_add_u32 %s, %s, %s'%(T1,T1,T3)); e('s_add_u32 %s, %s, %d'%(T1,T1,VB))
        for j in range(3):
            pack(j)
            if j<2: e('buffer_store_dwordx4 %s, v15, %s, %s offen offset:%d sc1'%(v(PK+4*j,4),WS,T0,2048*j))
            else: e('buffer_store_dwordx4 %s, v14, %s, %s offen sc1'%(v(PK+4*j,4),WS,T1))
        wdma(0,3,0)
    if s==15: stamp(3)
stamp(3)
if opt['p1']>=30: kvld()
qld()
A=220; EX=180; PK=168
e('s_mul_i32 %s, %s, 86'%(T0,QBI)); e('s_lshr_b32 %s, %s, 5'%(T1,W1A)); e('s_add_u32 %s, %s, %s'%(T0,T0,T1)); e('s_add_u32 %s, %s, %s'%(T0,T0,KH)); e('s_lshl_b32 %s, %s, 10'%(T0,T0)); e('s_add_u32 %s, %s, %d'%(T0,T0,HB))
e('s_mov_b32 s4, 0xbfb8aa3b'); e('s_mov_b32 s5, 0xbfb8aa3b')
for j in range(3):
    for r in range(0,8,2): e('v_pk_mul_f32 %s, %s, s[4:5]'%(v(EX+r,2),v(A+8*j+r,2)))
    for r in range(8): e('v_exp_f32 v%d, v%d'%(EX+r,EX+r))
    for r in range(0,8,2): e('v_pk_add_f32 %s, %s, 1.0 op_sel_hi:[1,0]'%(v(EX+r,2),v(EX+r,2)))
    for r in range(8): e('v_rcp_f32 v%d, v%d'%(EX+r,EX+r))
    for r in range(0,8,2): e('v_pk_mul_f32 %s, %s, %s'%(v(A+8*j+r,2),v(A+8*j+r,2),v(EX+r,2)))
    pack(j)
    if j==2: e('s_add_u32 %s, %s, 4096'%(T0,T0))
    e('buffer_store_dwordx4 %s, v15, %s, %s offen offset:%d sc1'%(v(PK+4*j,4),WS,T0,2048*(j&1)))
stamp()
e('v_lshrrev_b32 v3, 2, v1'); e('v_and_b32 v10, 3, v1'); e('v_lshlrev_b32 v10, 4, v10'); e('v_lshl_add_u32 v8, v3, 10, v10')
e('s_mul_i32 %s, %s, 22'%(T5,KQ)); e('s_cmp_eq_u32 %s, 3'%KQ); e('s_subb_u32 %s, %s, 0'%(T5,T5))
e('s_add_u32 %s, %s, %s'%(T2,T5,TG2)); e('s_lshl_b32 %s, %s, 14'%(T2,T2)); e('s_lshl_b32 %s, %s, 7'%(T0,CB)); e('s_add_u32 %s, %s, %s'%(T2,T2,T0))
e('s_lshl_b32 %s, %s, 11'%(T4,KQ)); e('s_lshl_b32 %s, %s, 13'%(T0,TG2)); e('s_add_u32 %s, %s, %s'%(T4,T4,T0))
def slot(u): return ((u+12)%18)*8192
def w3dma(u):
    if u==22:
        e('s_lshl_b32 %s, %s, 3'%(T2,KQ)); e('s_add_u32 %s, %s, %s'%(T2,T2,TG2)); e('s_lshl_b32 %s, %s, 14'%(T2,T2)); e('s_lshl_b32 %s, %s, 7'%(T0,CB)); e('s_add_u32 %s, %s, %s'%(T2,T2,T0))
    for j in range(2):
        if opt['sg'] and 12<=u<18: e('buffer_load_dwordx4 %s, v8, %s, %s offen offset:%d'%(v(176+4*(u-12+j),4),W2,T2,64*j)); continue
        e('s_add_u32 m0, %s, %d'%(T4,slot(u)+960*j)); e('buffer_load_dwordx4 v8, %s, %s offen offset:%d lds'%(W2 if u<22 else WO,T2,64*j))
    e('s_add_u32 %s, %s, 32768'%(T2,T2))
def smf(d,c): e('v_mfma_f32_32x32x16_bf16 %s, %s, %s, %s'%(v(S+16*(d%3),16),v(KF+4*d,4),v(QF,4),c))
e('s_lshl_b32 %s, %s, 1'%(T0,TG)); e('s_add_u32 %s, %s, %s'%(T0,T0,KH)); e('s_lshl_b32 %s, %s, 10'%(T0,T0)); e('s_add_u32 %s, %s, %d'%(T0,T0,KV)); e('v_add_u32 v7, %s, v14'%T0)
e('v_lshrrev_b32 v3, 5, v1'); e('v_and_b32 v10, 15, v1'); e('v_lshlrev_b32 v10, 4, v10'); e('v_lshl_add_u32 v10, v3, 8, v10'); e('s_add_u32 %s, %s, 24576'%(T0,T0)); e('v_add_u32 v9, %s, v10'%T0)
bar(3); stamp()
for d in range(9): e('ds_read_b128 %s, v7 offset:%d'%(v(KF+4*d,4),(8-d)*2048))
def vread(d):
    e('s_mov_b32 exec_lo, 0xffff'); e('s_mov_b32 exec_hi, 0xffff')
    for c in range(2): e('ds_read_b128 %s, v9 offset:%d'%(v(VF+8*(d&1)+4*c,4),(8-d)*2048+512*c))
    e('s_mov_b64 exec, -1')
n3=min(len(pfl),opt['pfp'])
for k in range(n3): pf1()
for u in range(0,2*opt['w0'],2): w3dma(u)
e('s_waitcnt lgkmcnt(0)')
c1=lambda d: v(MD,16) if d==0 else v(MF,16) if d==8 else '0'
smf(0,c1(0)); smf(1,c1(1))
for d in range(9):
    if d+2<9: smf(d+2,c1(d+2))
    b=S+16*(d%3)
    if d==0: e('v_max_f32 v4, v%d, v%d'%(b,b+1)); e('v_max_f32 v5, v%d, v%d'%(b+2,b+3))
    else: e('v_max3_f32 v4, v%d, v%d, v4'%(b,b+1)); e('v_max3_f32 v5, v%d, v%d, v5'%(b+2,b+3))
    for r in range(4,16,2): e('v_max3_f32 v%d, v%d, v%d, v%d'%(4+((r>>1)&1),b+r,b+r+1,4+((r>>1)&1)))
    if d<8: e('s_cmp_eq_u32 %s, %d'%(QBI,d)); e('s_cbranch_scc1 L_a1')
e.label('L_a1')
e('v_max_f32 v4, v4, v5'); e('v_mov_b32 v5, v4'); e('v_permlane32_swap_b32 v4, v5'); e('v_max_f32 v4, v4, v5')
e.nop(8)
for r in range(16): e('v_sub_f32 v%d, v%d, v4'%(MD+r,MD+r))
for r in range(16): e('v_sub_f32 v%d, 0, v4'%(NM+r))
for r in range(16): e('v_sub_f32 v%d, v%d, v4'%(MF+r,MF+r))
e('s_waitcnt vmcnt(%d)'%(2*opt['w0']+n3))
sig(0,1,'f2')
e('s_lshr_b32 %s, %s, 1'%(T0,RB2)); e('s_lshl_b32 %s, %s, 7'%(T0,T0)); e('v_and_b32 v6, 15, v1'); e('v_lshlrev_b32 v6, 3, v6'); e('v_add_u32 v6, %s, v6'%T0)
e('s_mov_b32 %s, %d'%(T1,FL+2048))
vread(0)
c2=lambda d: v(MD,16) if d==0 else v(MF,16) if d==8 else v(NM,16)
smf(0,c2(0))
for d in range(9):
    if d<8:
        e('s_cmp_lg_u32 %s, %d'%(QBI,d)); e('s_cbranch_scc1 L_m%d'%d)
        for r in range(16): e('v_mov_b32 v%d, 0xf149f2ca'%(NM+r)); e('v_mov_b32 v%d, 0xf149f2ca'%(MF+r))
        e.label('L_m%d'%d)
        smf(d+1,c2(d+1)); vread(d+1)
    if d+opt['w0']<6+3*opt['sg']: w3dma(2*(d+opt['w0']))
    pf1()
    if d==8: e('buffer_load_dwordx2 v[244:245], v6, %s, %s offen sc1'%(WS,T1))
    b=S+16*(d%3); p=P+8*(d&1)
    for c in range(2):
        for r in range(8): e('v_exp_f32 v%d, v%d'%(b+8*c+r,b+8*c+r))
        for r in range(4): e('v_cvt_pk_bf16_f32 v%d, v%d, v%d'%(p+4*c+r,b+8*c+2*r,b+8*c+2*r+1))
    e('s_waitcnt lgkmcnt(%d)'%(2 if d<8 else 0))
    for c in range(2): e('v_mfma_f32_32x32x16_bf16 %s, %s, %s, %s'%(v(O,16),v(VF+8*(d&1)+4*c,4),v(p+4*c,4),v(O,16) if d+c else '0'))

e('v_rcp_f32 v4, v%d'%(O+8))
for r in range(8): e('v_mul_f32 v%d, v%d, v4'%(O+r,O+r))
for r in range(4): e('v_cvt_pk_bf16_f32 v%d, v%d, v%d'%(240+r,O+2*r,O+2*r+1))
stamp()
e('s_lshl_b32 %s, %s, 5'%(T0,QBI)); e('s_lshl_b32 %s, %s, 1'%(T1,CG)); e('s_add_u32 %s, %s, %s'%(T0,T0,T1)); e('s_add_u32 %s, %s, %s'%(T0,T0,KH)); e('s_lshl_b32 %s, %s, 10'%(T0,T0)); e('s_add_u32 %s, %s, %d'%(T0,T0,OB))
e('buffer_store_dwordx4 %s, v14, %s, %s offen sc1'%(v(240,4),WS,T0))
HF,A3,W3,XR=16,136,208,204
HS,OS=WQA,WQB
e('s_lshl_b32 %s, %s, 1'%(T1,RB2)); e('s_add_u32 %s, %s, %s'%(T1,T1,TG2))
e('s_mul_i32 %s, %s, 86'%(HS,T1)); e('s_add_u32 %s, %s, %s'%(HS,HS,T5)); e('s_lshl_b32 %s, %s, 10'%(HS,HS)); e('s_add_u32 %s, %s, %d'%(HS,HS,HB))
e('s_lshl_b32 %s, %s, 5'%(OS,T1)); e('s_lshl_b32 %s, %s, 3'%(T3,KQ)); e('s_add_u32 %s, %s, %s'%(OS,OS,T3)); e('s_lshl_b32 %s, %s, 10'%(OS,OS)); e('s_add_u32 %s, %s, %d'%(OS,OS,OB))
if opt['fin']==0: e('v_lshrrev_b32 v3, 3, v0'); e('v_and_b32 v10, 7, v0'); e('v_lshlrev_b32 v10, 4, v10'); e('v_lshl_add_u32 v9, v3, 10, v10')
else: e('v_and_b32 v3, 31, v1'); e('v_lshrrev_b32 v10, 5, v1'); e('v_lshlrev_b32 v10, 4, v10'); e('v_lshl_add_u32 v9, v3, 10, v10'); e('s_lshl_b32 %s, %s, 15'%(T0,TG2)); e('s_lshl_b32 %s, %s, 5'%(T3,KQ)); e('s_add_u32 %s, %s, %s'%(T0,T0,T3)); e('v_add_u32 v9, %s, v9'%T0)
e('v_lshrrev_b32 v10, 5, v1'); e('v_bfe_u32 v3, v1, 2, 2'); e('v_lshl_add_u32 v3, v10, 2, v3'); e('v_lshlrev_b32 v3, 6, v3')
e('v_and_b32 v11, 16, v1'); e('v_lshl_add_u32 v3, v11, 1, v3'); e('v_and_b32 v11, 3, v1'); e('v_lshl_add_u32 v3, v11, 3, v3')
e('s_lshl_b32 %s, %s, 11'%(T0,KQ)); e('v_add_u32 v11, %s, v3'%T0); e('v_add_u32 v12, 49152, v11'); e('v_add_u32 v13, 98304, v11')
check('2',FL+2048,1); stamp()
vq=['o']
def vw(tags,extra=''):
    idx=[i for i,t in enumerate(vq) if t in tags]
    if idx: n=len(vq)-1-max(idx); del vq[:max(idx)+1]; e('s_waitcnt vmcnt(%d) %s'%(n,extra))
    elif extra: e('s_waitcnt '+extra)
def ald(u):
    k=u if u<22 else u-22; r=HS if u<22 else OS
    e('buffer_load_dwordx4 %s, v14, %s, %s offen offset:%d%s'%(v(HF+4*u,4),WS,r,1024*(k&3),'' if opt['nsc'] else ' sc1')); vq.append(('a',u))
    if k&3==3: e('s_add_u32 %s, %s, 4096'%(r,r))
def w3d(u): w3dma(u); vq.extend([('w',u)]*2)
LA=opt['la']
if opt['hp']:
    e('s_lshl_b32 %s, %s, 11'%(T0,CB)); e('s_add_u32 %s, %s, %s'%(T0,T0,HS)); e('s_add_u32 %s, %s, 6144'%(T0,T0))
    for k in range(2): e('buffer_load_dwordx4 v[248:251], v14, %s, %s offen offset:%d%s'%(WS,T0,1024*k,'' if opt['nsc'] else ' sc1')); vq.append('pf')
for u in range(LA): ald(u)
e('s_barrier'); stamp()
def w3read(u):
    a=slot(u); b=VR0+a//49152; a%=49152
    for j in range(2):
        for jj in range(2): e('ds_read_b64_tr_b16 %s, v%d offset:%d'%(v(W3+(u%3)*8+4*j+2*jj,2),b,a+1024*j+512*jj))
w3read(0); w3read(1)
if opt['sg']:
    e('v_add_u32 v7, %s, v14'%T4); e('v_add_u32 v7, %d, v7'%slot(12))
    for k in range(6): e('ds_write_b128 v7, %s offset:%d'%(v(176+4*k,4),16384*(k>>1)+1024*(k&1)))
WD={1:12,3:14,5:16,6:18,8:20,10:22,16:24,17:26,18:28}
na=[LA]; PU=opt['pu']
for u in range(30):
    if u==6: e('s_barrier')
    if u==10 and not opt['sg']: vw([('w',16)]); e('s_barrier')
    if u==16: vw([('w',22)]); e('s_barrier'); stamp()
    if u==22: vw([('w',28)]); e('s_barrier'); stamp()
    if u==26 and opt['fin']: e('s_barrier')
    if u==29:
        vw(['x'])
        if opt['fin']:
            for r in range(2): e('v_permlane32_swap_b32 v%d, v%d'%(XR+r,XR+2+r))
    if u==PU-2: e('s_mov_b32 %s, %d'%(T1,FL+4096)); e('buffer_load_dwordx2 v[244:245], v6, %s, %s offen sc1'%(WS,T1)); vq.append('p')
    if u==PU: n=len(vq)-1-vq.index('p'); del vq[:vq.index('p')+1]; check('3',FL+4096,n)
    if u+2<30: w3read(u+2)
    if u in WD and not (opt['sg'] and u<6): w3d(WD[u])
    for k in range(2 if u>=PU else 1):
        if na[0]<(30 if u>=PU else 22): ald(na[0]); na[0]+=1
    if u==20:
        e('s_lshl_b32 %s, %s, 16'%(T3,RB2)); e('s_lshl_b32 %s, %s, 7'%(T0,CB)); e('s_add_u32 %s, %s, %s'%(T3,T3,T0))
        e('buffer_load_dwordx4 %s, v9, %s, %s offen'%(v(XR,4),X,T3)); vq.append('x')
    lg=8 if u+2<30 else 4 if u+1<30 else 0
    vw([('a',u)],'lgkmcnt(%d)'%lg)
    if u==21: e('s_cmp_ge_u32 %s, 2'%KQ); e('s_cbranch_scc1 L_s21')
    for j in range(2): e('v_mfma_f32_32x32x16_bf16 %s, %s, %s, %s'%(v(A3+16*j,16),v(W3+(u%3)*8+4*j,4),v(HF+4*u,4),v(A3+16*j,16) if u else '0'))
    if u==21: e.label('L_s21')
    if u==0: sig(4,2,'f3')
    if u==2:
        e('s_or_b32 %s, %s, %s'%(T0,SID,W)); e('s_cmp_lg_u32 %s, 0'%T0); e('s_cbranch_scc1 L_noep')
        e('v_lshlrev_b32 v7, 3, v1'); poll('e',7,FL,4)
        e('v_mov_b32 v4, s6'); e('v_mov_b32 v5, s7'); e('v_mov_b32 v3, 0'); e('s_mov_b32 %s, %d'%(T0,EP)); e('s_mov_b64 exec, 1'); e('buffer_store_dwordx2 v[4:5], v3, %s, %s offen sc1'%(WS,T0)); e('s_mov_b64 exec, -1')
        e.label('L_noep')
stamp()
if opt['fin']==0:
    e('s_barrier')
    e('s_mul_i32 %s, %s, 17408'%(T0,KQ)); e('s_mul_i32 %s, %s, 8704'%(T3,TG2)); e('s_add_u32 %s, %s, %s'%(T0,T0,T3))
    e('v_and_b32 v3, 31, v1'); e('v_mul_u32_u24 v3, 272, v3'); e('v_lshrrev_b32 v10, 5, v1'); e('v_lshl_add_u32 v3, v10, 4, v3'); e('v_add_u32 v3, %s, v3'%T0)
    for j in range(2):
        for q in range(4): e('ds_write_b128 v3, %s offset:%d'%(v(A3+16*j+4*q,4),128*j+32*q))
    e('v_lshrrev_b32 v3, 3, v0'); e('v_mul_u32_u24 v3, 272, v3'); e('v_and_b32 v10, 7, v0'); e('v_lshl_add_u32 v3, v10, 5, v3')
    for r in range(4): e('v_lshlrev_b32 v%d, 16, v%d'%(64+2*r,XR+r)); e('v_and_b32 v%d, 0xffff0000, v%d'%(65+2*r,XR+r))
    e('s_waitcnt lgkmcnt(0)'); e('s_barrier')
    for k in range(4):
        for i in range(2): e('ds_read_b128 %s, v3 offset:%d'%(v(16+8*k+4*i,4),17408*k+16*i))
    for k in range(4):
        e('s_waitcnt lgkmcnt(%d)'%(6-2*k))
        for r in range(8): e('v_add_f32 v%d, v%d, v%d'%(64+r,64+r,16+8*k+r))
    for r in range(4): e('v_cvt_pk_bf16_f32 v%d, v%d, v%d'%(72+r,64+2*r,65+2*r))
    e('s_lshl_b32 %s, %s, 16'%(T3,RB2)); e('s_lshl_b32 %s, %s, 7'%(T0,CB)); e('s_add_u32 %s, %s, %s'%(T3,T3,T0))
    e('buffer_store_dwordx4 v[72:75], v9, %s, %s offen'%(OUT,T3))
else:
    FB=98304
    e('s_lshl_b32 %s, %s, 11'%(T0,W)); e('s_add_u32 %s, %s, %d'%(T0,T0,FB)); e('v_add_u32 v3, %s, v14'%T0); e.nop(16)
    for k in range(4):
        e('s_cmp_eq_u32 %s, %d'%(KQ,k)); e('s_cbranch_scc1 L_o%d'%k)
        for i in range(2): e('ds_write_b128 v3, %s offset:%d'%(v(A3+8*k+4*i,4),16384*k+1024*i))
        e('s_branch L_n%d'%k); e.label('L_o%d'%k)
        for r in range(4):
            e('v_lshlrev_b32 v%d, 16, v%d'%(64+2*r,XR+r)); e('v_and_b32 v%d, 0xffff0000, v%d'%(65+2*r,XR+r))
            e('v_pk_add_f32 %s, %s, %s'%(v(64+2*r,2),v(64+2*r,2),v(A3+8*k+2*r,2)))
        e.label('L_n%d'%k)
    e('s_lshl_b32 %s, %s, 14'%(T0,KQ)); e('s_add_u32 %s, %s, %d'%(T0,T0,FB))
    for k in range(1,4):
        e('s_add_u32 %s, %s, %d'%(T1,W,2*k)); e('s_and_b32 %s, %s, 7'%(T1,T1)); e('s_lshl_b32 %s, %s, 11'%(T1,T1)); e('s_add_u32 %s, %s, %s'%(T1,T1,T0)); e('v_add_u32 v%d, %s, v14'%(3+k,T1))
    e('s_waitcnt lgkmcnt(0)'); e('s_barrier')
    for k in range(1,4):
        for i in range(2): e('ds_read_b128 %s, v%d offset:%d'%(v(16+8*k+4*i,4),3+k,1024*i))
    for k in range(1,4):
        e('s_waitcnt lgkmcnt(%d)'%(6-2*k))
        for r in range(4): e('v_pk_add_f32 %s, %s, %s'%(v(64+2*r,2),v(64+2*r,2),v(16+8*k+2*r,2)))
    for r in range(4): e('v_cvt_pk_bf16_f32 v%d, v%d, v%d'%(72+r,64+2*r,65+2*r))
    for r in range(2): e('v_permlane32_swap_b32 v%d, v%d'%(72+r,74+r))
    e('s_lshl_b32 %s, %s, 16'%(T3,RB2)); e('s_lshl_b32 %s, %s, 7'%(T0,CB)); e('s_add_u32 %s, %s, %s'%(T3,T3,T0))
    e('buffer_store_dwordx4 v[72:75], v9, %s, %s offen %s'%(OUT,T3,['','sc1','nt','sc0 sc1'][opt['ost']]))
if opt['stamp']:
    stamp(3); e('s_memrealtime s[62:63]'); e('s_waitcnt lgkmcnt(0)')
    e('s_lshl_b32 %s, s2, 3'%T0); e('s_add_u32 %s, %s, %s'%(T0,T0,W)); e('s_lshl_b32 %s, %s, 7'%(T0,T0)); e('s_add_u32 %s, %s, %d'%(T0,T0,15<<20))
    e('v_mov_b32 v3, 0'); e('s_mov_b64 exec, 1')
    for i in range(nst[0]+2):
        e('v_mov_b32 v10, s%d'%(60+2*i)); e('buffer_store_dword v10, v3, %s, %s offen offset:%d'%(WS,T0,4*i))
e.label('L_end'); e('s_endpgm')
hdr=open('cdna_kernels/%s.s.ref'%NAME).read().split('; Override')[0]
txt=hdr+'''; @launch grid=(256,1,1) block=(512,1,1) lds=163840
.amdgcn_target "amdgcn-amd-amdhsa--gfx950"
.text
.globl %s_kernel
.p2align 8
.type %s_kernel,@function
%s_kernel:
'''%(NAME,NAME,NAME)+e.text()+'''.section .rodata,"a"
.p2align 6
.amdhsa_kernel %s_kernel
  .amdhsa_next_free_vgpr 256
  .amdhsa_next_free_sgpr 102
  .amdhsa_accum_offset 256
  .amdhsa_group_segment_fixed_size 0
  .amdhsa_kernarg_size 72
  .amdhsa_user_sgpr_count 2
  .amdhsa_user_sgpr_kernarg_segment_ptr 1
  .amdhsa_system_sgpr_workgroup_id_x 1
.end_amdhsa_kernel
'''%NAME
open(sys.argv[1],'w').write(txt)
```

```python
import sys
from emit import E
NAME='parallel_sum__sliding_block__dense_activation_silu__prompt'
opt=dict(stamp=0,map=1,rot=1,pf=4,wsp=16,il=1,pr=1,fs=20,wpre=6,w0=0,la=6,pu=19,pfp=0,pe=21,pn=7,cp=1,tl=0,sg=0,nsc=0,hp=0,sj=0,kf=1,p1=31,fin=1,ms=1,ost=0)
for a in sys.argv[2:]:
    k,v=a.split('='); opt[k]=int(v)
e=E()
QB,KB,VB,OB,HB=0,2<<20,4<<20,6<<20,8<<20
X,WQ,WO,W1,W2,OUT,DBG,WS=['s[%d:%d]'%(8+4*i,11+4*i) for i in range(8)]
RB,CG,W,TG,KH,ONES,QBI,T0,T1,T2,T3,RB2,CB,KQ,TG2,SID,T4,T5,SCNT,ROT,TGS,WQA,WQB,W1A='s40 s41 s42 s43 s44 s45 s46 s47 s48 s49 s50 s51 s52 s53 s54 s55 s56 s57 s58 s59 s3 s98 s99 s100'.split()
EP=14<<20; FL=EP+4096
def v(a,n=1): return 'v%d'%a if n==1 else 'v[%d:%d]'%(a,a+n-1)
nst=[0]
def stamp(l=1):
    if opt['stamp']&l and nst[0]<16:
        i=nst[0]; nst[0]+=1
        e('s_memtime s[%d:%d]'%(64+2*i,65+2*i)); e('s_waitcnt lgkmcnt(0)')
VWQ,VW1,VR0=8,9,11
XF,ACC,WF,RAW=16,144,168,192
CNT=160768; XR=98304
e('s_cmp_ge_u32 s2, 256'); e('s_cbranch_scc1 L_end')
if opt['stamp']: e('s_memrealtime s[60:61]'); e('s_memtime s[96:97]'); e('s_waitcnt lgkmcnt(0)'); e('s_mov_b32 s101, s96')
e('s_load_dwordx16 s[64:79], s[0:1], 0'); e('s_load_dwordx2 s[80:81], s[0:1], 64')
e('v_lshrrev_b32 v3, 6, v0'); e('v_and_b32 v1, 63, v0'); e('v_readfirstlane_b32 %s, v3'%W)
e('s_and_b32 %s, s2, 7'%T0); e('s_lshr_b32 %s, s2, 3'%T1)
if opt['cp']:
    e('s_getpc_b64 s[4:5]'); e.label('L_pc')
    e('v_lshl_add_u32 v4, %s, 3, v3'%T1); e('v_min_u32 v4, (L_end-L_pc)>>7, v4'); e('v_lshlrev_b32 v4, 7, v4'); e('v_mov_b32 v5, s5')
    e('v_add_co_u32 v4, vcc, s4, v4'); e('v_addc_co_u32 v5, vcc, 0, v5, vcc'); e('global_load_dword v2, v[4:5], off'); e.nop(2)
if opt['map']==0:
    e('s_lshr_b32 %s, %s, 4'%(RB,T1)); e('s_lshl_b32 %s, %s, 1'%(T2,T0)); e('s_add_u32 %s, %s, %s'%(RB,RB,T2)); e('s_and_b32 %s, %s, 15'%(CG,T1))
elif opt['map']==2:
    e('s_lshr_b32 %s, %s, 2'%(RB,T1)); e('s_lshr_b32 %s, %s, 2'%(T2,T0)); e('s_lshl_b32 %s, %s, 3'%(T2,T2)); e('s_add_u32 %s, %s, %s'%(RB,RB,T2))
    e('s_and_b32 %s, %s, 3'%(CG,T1)); e('s_and_b32 %s, %s, 3'%(T2,T0)); e('s_lshl_b32 %s, %s, 2'%(T2,T2)); e('s_add_u32 %s, %s, %s'%(CG,CG,T2))
else:
    e('s_lshr_b32 %s, %s, 3'%(RB,T1)); e('s_lshr_b32 %s, %s, 1'%(T2,T0)); e('s_lshl_b32 %s, %s, 2'%(T2,T2)); e('s_add_u32 %s, %s, %s'%(RB,RB,T2))
    e('s_and_b32 %s, %s, 7'%(CG,T1)); e('s_and_b32 %s, %s, 1'%(T2,T0)); e('s_lshl_b32 %s, %s, 3'%(T2,T2)); e('s_add_u32 %s, %s, %s'%(CG,CG,T2))
e('s_lshr_b32 %s, %s, 3'%(RB2,T1)); e('s_lshl_b32 %s, %s, 2'%(T2,T0)); e('s_add_u32 %s, %s, %s'%(RB2,RB2,T2)); e('s_and_b32 %s, %s, 7'%(CB,T1))
e('s_lshl_b32 %s, %s, 4'%(SID,RB)); e('s_add_u32 %s, %s, %s'%(SID,SID,CG))
e('s_and_b32 %s, %s, 3'%(TG,W)); e('s_lshr_b32 %s, %s, 2'%(KH,W)); e('s_and_b32 %s, %s, 1'%(TG2,W)); e('s_lshr_b32 %s, %s, 1'%(KQ,W))
e('s_lshl_b32 %s, %s, 2'%(QBI,RB)); e('s_add_u32 %s, %s, %s'%(QBI,QBI,TG)); e('s_mov_b32 %s, 0x3f803f80'%ONES)
if opt['rot']: e('s_lshl_b32 %s, %s, 1'%(ROT,RB)); e('s_add_u32 %s, %s, %s'%(ROT,ROT,CG)); e('s_and_b32 %s, %s, 7'%(ROT,ROT))
else: e('s_mov_b32 %s, 0'%ROT)
e('v_lshrrev_b32 v3, 3, v1'); e('v_and_b32 v10, 7, v1'); e('v_lshlrev_b32 v4, 4, v10'); e('v_lshl_add_u32 v4, v3, 10, v4'); e('v_add_u32 v5, 8192, v4')
e('s_lshl_b32 %s, %s, 17'%(T0,RB)); e('s_lshl_b32 %s, %s, 14'%(T1,W)); e('s_add_u32 %s, %s, %s'%(T0,T0,T1))
e('s_waitcnt lgkmcnt(0)')
sz=[2097152,1572864,524288,1409024,1409024,2097152,256,16<<20]
src=[64,66,68,72,74,76,78,80]
def srd(i):
    b=8+4*i
    e('s_mov_b32 s%d, s%d'%(b,src[i])); e('s_mov_b32 s%d, s%d'%(b+1,src[i]+1)); e('s_mov_b32 s%d, %d'%(b+2,sz[i])); e('s_mov_b32 s%d, 0x20000'%(b+3))
srd(0)
PF=opt['pf']
e('s_mov_b32 %s, %s'%(T5,T0)); e('s_mov_b32 %s, %s'%(SCNT,ROT))
def xld(i):
    sg,rg=i>>1,i&1
    if rg==0: e('s_add_u32 %s, %s, %d'%(TGS,SCNT,sg)); e('s_and_b32 %s, %s, 7'%(TGS,TGS)); e('s_lshl_b32 %s, %s, 7'%(TGS,TGS)); e('s_add_u32 %s, %s, %s'%(TGS,TGS,T5))
    e('buffer_load_dwordx4 %s, v%d, %s, %s offen'%(v(RAW+4*i,4),4+rg,X,TGS))
for i in range(PF): xld(i)
e('s_add_u32 s4, s80, %d'%EP); e('s_addc_u32 s5, s81, 0'); e('s_load_dwordx2 s[6:7], s[4:5], 0')
for i in range(1,8): srd(i)
if opt['stamp']: e('s_mov_b32 s64, s101'); nst[0]=1
e('v_xor_b32 v10, v10, v3'); e('v_lshlrev_b32 v10, 4, v10'); e('v_lshl_add_u32 v6, v3, 9, v10'); e('s_lshl_b32 %s, %s, 13'%(T1,W)); e('s_add_u32 %s, %s, %d'%(T1,T1,XR)); e('v_add_u32 v6, %s, v6'%T1)
e('v_lshrrev_b32 v3, 2, v1'); e('v_lshrrev_b32 v10, 5, v1'); e('v_lshlrev_b32 v10, 1, v10'); e('v_xor_b32 v10, v10, v1'); e('v_and_b32 v10, 3, v10'); e('v_lshlrev_b32 v10, 4, v10')
e('v_mul_u32_u24 v8, 3072, v3'); e('v_add_u32 v8, v8, v10'); e('v_mul_u32_u24 v9, 2752, v3'); e('v_add_u32 v9, v9, v10')
e('v_lshlrev_b32 v14, 4, v1')
e('s_mul_i32 %s, %s, 3072'%(T4,W))
e('s_lshl_b32 %s, %s, 6'%(WQB,CG)); e('s_add_u32 %s, %s, 2048'%(WQB,WQB))
e('s_and_b32 %s, %s, 1'%(WQA,CG)); e('s_lshl_b32 %s, %s, 10'%(WQA,WQA)); e('s_lshr_b32 %s, %s, 1'%(T0,CG)); e('s_lshl_b32 %s, %s, 7'%(T0,T0)); e('s_add_u32 %s, %s, %s'%(WQA,WQA,T0))
e('s_mul_i32 %s, %s, 3'%(W1A,CG)); e('s_min_u32 %s, %s, 40'%(W1A,W1A)); e('s_lshl_b32 %s, %s, 6'%(W1A,W1A))
e('s_add_u32 %s, %s, %s'%(ROT,ROT,KH))
WQR=[0,24576,49152,73728]; W1R=[0,24576,98304,98304+24576]
def wdma(q,c,j):
    if j==0:
        e('s_add_u32 %s, %s, %d'%(T2,ROT,2*c)); e('s_and_b32 %s, %s, 7'%(T2,T2)); e('s_lshl_b32 %s, %s, 2'%(T2,T2)); e('s_add_u32 %s, %s, %s'%(T2,T2,TG))
        if q: e('s_mul_i32 %s, %s, 49152'%(T2,T2)); e('s_add_u32 %s, %s, %s'%(T3,T2,WQB)); e('s_add_u32 %s, %s, %s'%(T2,T2,WQA))
        else: e('s_mul_i32 %s, %s, 44032'%(T2,T2)); e('s_add_u32 %s, %s, %s'%(T2,T2,W1A))
    if q and j==2: e('s_add_u32 m0, %s, %d'%(T4,WQR[c]+2048)); e('buffer_load_dwordx4 v%d, %s, %s offen lds'%(VWQ,WQ,T3))
    elif q: e('s_add_u32 m0, %s, %d'%(T4,WQR[c]+960*j)); e('buffer_load_dwordx4 v%d, %s, %s offen offset:%d lds'%(VWQ,WQ,T2,64*j))
    else: e('s_add_u32 m0, %s, %d'%(T4,W1R[c]+960*j)); e('buffer_load_dwordx4 v%d, %s, %s offen offset:%d lds'%(VW1,W1,T2,64*j))
XA=160
e('v_and_b32 v3, 15, v1'); e('v_lshrrev_b32 v10, 4, v1'); e('v_xor_b32 v11, v10, v3'); e('v_lshlrev_b32 v11, 4, v11'); e('v_lshl_add_u32 v11, v3, 9, v11')
e('s_lshl_b32 %s, %s, 14'%(T1,TG)); e('s_add_u32 %s, %s, %d'%(T1,T1,XR)); e('v_add_u32 v7, %s, v11'%T1)
e('v_lshrrev_b32 v11, 5, v1'); e('v_lshl_add_u32 v15, v11, 4, v3'); e('v_and_b32 v12, 1, v10'); e('v_lshl_add_u32 v15, v12, 5, v15'); e('v_lshlrev_b32 v15, 4, v15')
e('v_mul_u32_u24 v11, 3072, v11'); e('v_lshl_add_u32 v11, v12, 9, v11'); e('v_xor_b32 v12, %s, v12'%KH); e('v_lshl_add_u32 v11, v12, 5, v11')
e('v_bfe_u32 v3, v1, 2, 2'); e('v_lshl_add_u32 v11, v3, 6, v11'); e('v_and_b32 v3, 3, v1'); e('v_lshl_add_u32 v11, v3, 3, v11')
e('v_add_u32 v12, 49152, v11'); e('v_add_u32 v13, 98304, v11')
ST=144
e('v_lshrrev_b32 v3, 4, v1'); e('v_bfe_u32 v10, v1, 2, 2'); e('v_cmp_eq_u32 vcc, v3, v10'); e('v_mov_b32 v3, %s'%ONES)
for r in range(4): e('v_cndmask_b32 v%d, 0, v3, vcc'%(176+r))
e('s_mov_b32 s82, 0xaaaaaaaa'); e('s_mov_b32 s83, s82'); e('s_mov_b32 s84, 0xcccccccc'); e('s_mov_b32 s85, s84')
for i in range(16):
    e('s_waitcnt vmcnt(%d)'%(PF-1))
    if i in (0,8): stamp(2)
    if i+PF<16: xld(i+PF)
    else: wdma(1,(i+PF-16)//3,(i+PF-16)%3)
    SA,QA=152+4*(i&1),160+8*(i&1)
    if opt['ms']: e('v_mfma_f32_16x16x32_bf16 %s, v[176:179], %s, %s'%(v(SA,4),v(RAW+4*i,4),v(SA,4) if i>1 else '0'))
    for r in range(4):
        u=16+8*i+2*r
        if opt['ms'] and r&1==0: e('v_mfma_f32_4x4x4_16b_bf16 %s, %s, %s, %s'%(v(QA+2*r,4),v(RAW+4*i+r,2),v(RAW+4*i+r,2),v(QA+2*r,4) if i>1 else '0'))
        e('v_lshlrev_b32 v%d, 16, v%d'%(u,RAW+4*i+r)); e('v_and_b32 v%d, 0xffff0000, v%d'%(u+1,RAW+4*i+r))
    for r in range(4):
        if opt['ms']: break
        u=v(16+8*i+2*r,2); s_=v(ST+2*(i&1),2); q_=v(ST+4+2*(i&1),2)
        if i<2 and r==0: e('v_pk_add_f32 %s, %s, 0'%(s_,u)); e('v_pk_mul_f32 %s, %s, %s'%(q_,u,u))
        else: e('v_pk_add_f32 %s, %s, %s'%(s_,s_,u)); e('v_pk_fma_f32 %s, %s, %s, %s'%(q_,u,u,q_))
stamp(2)
nq=[PF]
def wnext():
    if nq[0]<12: wdma(1,nq[0]//3,nq[0]%3); nq[0]+=1
if opt['ms']:
    e.nop(8)
    for k in range(2):
        QA=160+8*k
        e('v_pk_add_f32 %s, %s, %s'%(v(QA,2),v(QA,2),v(QA+4,2))); e('v_pk_add_f32 %s, %s, %s'%(v(QA+2,2),v(QA+2,2),v(QA+6,2)))
        e('v_cndmask_b32 v%d, v%d, v%d, s[82:83]'%(QA,QA,QA+1)); e('v_cndmask_b32 v%d, v%d, v%d, s[82:83]'%(QA+2,QA+2,QA+3))
        e('v_cndmask_b32 v%d, v%d, v%d, s[84:85]'%(ST+4+2*k,QA,QA+2))
    for k in range(2): e('v_mov_b32 v%d, v%d'%(ST+2*k,152+4*k))
    e.nop(2)
else:
    for k in range(4): e('v_add_f32 v%d, v%d, v%d'%(ST+2*k,ST+2*k,ST+2*k+1))
for dpp in ('quad_perm:[1,0,3,2]','quad_perm:[2,3,0,1]','row_half_mirror'):
    for k in range(4): e.raw('  v_add_f32_dpp v%d, v%d, v%d %s row_mask:0xf bank_mask:0xf'%(ST+2*k,ST+2*k,ST+2*k,dpp)); e.pos+=1
for k in range(2):
    m,q=ST+2*k,ST+4+2*k
    e('v_mul_f32 v%d, 0xbb000000, v%d'%(m,m)); e('v_mul_f32 v%d, 0x3b000000, v%d'%(q,q)); e('v_fma_f32 v%d, -v%d, v%d, v%d'%(q,m,m,q)); e('v_max_f32 v%d, 0, v%d'%(q,q)); e('v_add_f32 v%d, 0x3727c5ac, v%d'%(q,q))
    e('v_rsq_f32 v%d, v%d'%(q,q)); e('v_mul_f32 v%d, v%d, v%d'%(m,m,q)); e('v_mov_b32 v%d, v%d'%(q+1,q)); e('v_mov_b32 v%d, v%d'%(m+1,m))
def xwrite(i): e('ds_write_b128 v6, %s offset:%d'%(v(RAW+4*i,4),(i&1)*4096+(((i>>1)&3)^(i&1))*128))
def norm(i,ST):
    L=[]
    for r in range(4): u=v(16+8*i+2*r,2); L.append('v_pk_fma_f32 %s, %s, %s, %s'%(u,u,v(ST+4+2*(i&1),2),v(ST+2*(i&1),2)))
    for r in range(4): L.append('v_cvt_pk_bf16_f32 v%d, v%d, v%d'%(RAW+4*i+r,16+8*i+2*r,17+8*i+2*r))
    return L
for i in range(8):
    for t in norm(i,ST): e(t)
    xwrite(i)
    if i%opt['wsp']==0: wnext()
while nq[0]<opt['wpre']: wnext()
TL=2*opt['tl']
if TL:
    assert nq[0]==6
    e('v_lshrrev_b32 v3, 3, v0'); e('v_lshlrev_b32 v3, 18, v3'); e('buffer_load_dword v2, v3, %s, 0 offen sc1'%WS)
    e('s_lshl_b32 %s, %s, 16'%(T0,RB2)); e('v_mov_b32 v10, 0'); e('buffer_load_dword v2, v10, %s, %s offen sc1'%(OUT,T0))
XA=204
e('v_mov_b32 v%d, v7'%XA)
for s in range(1,4): e('v_xor_b32 v%d, %d, v7'%(XA+s,64*s))
e('s_waitcnt lgkmcnt(0)')
for r in range(8): e('v_mov_b32 v%d, v%d'%(208+r,ST+r))
e('s_mul_i32 %s, s7, 0x85ebca6b'%T0); e('s_add_u32 %s, %s, s6'%(T0,T0)); e('s_add_u32 s7, %s, 0x1234567'%T0); e('s_mul_i32 s6, s6, 0x9e3779b1'); e('s_add_u32 s6, s6, 0x7f4a7c15')
stamp(2); e('s_waitcnt vmcnt(%d)'%(nq[0]-3+TL)); e('s_barrier')
stamp(3)
def xread(s):
    for T in range(2): e('ds_read_b128 %s, v%d offset:%d'%(v(XF+8*s+4*T,4),XA+(s&3),256*((s>>2)&1)+8192*T))
def wread(reg,s,only=None):
    a=reg[s//4]+(s&3)*6144; b=VR0+a//49152; a%=49152
    for j in range(3):
        for jj in range(2):
            if only is None or only==2*j+jj: e('ds_read_b64_tr_b16 %s, v%d offset:%d'%(v(WF+(s%3)*12+4*j+2*jj,2),b,a+1024*j+256*jj))
def bar(n): e('s_waitcnt vmcnt(%d)'%n); e('s_barrier')
def flag(stage):
    e('s_mov_b64 exec, 1'); e('s_lshl_b32 %s, %s, 3'%(T0,SID)); e('s_add_u32 %s, %s, %d'%(T0,T0,FL+2048*stage)); e('v_mov_b32 v4, s6'); e('v_mov_b32 v5, s7'); e('v_mov_b32 v3, 0')
    e('buffer_store_dwordx2 v[4:5], v3, %s, %s offen sc1'%(WS,T0)); e('s_mov_b64 exec, -1')
PK=208
def pack(j):
    for T in range(2):
        for r in range(2): e('v_cvt_pk_bf16_f32 v%d, v%d, v%d'%(PK+4*j+2*T+r,A+8*j+4*T+2*r,A+8*j+4*T+2*r+1))
    for r in range(2): e('v_permlane32_swap_b32 v%d, v%d'%(PK+4*j+r,PK+4*j+2+r))
pfl=[(252,W2,k*16384,0) for k in (0,22,44,65)]+[(253,W2,k*16384,0) for k in (12,34,56,76)]+[(254,WO,0,1024*k) for k in range(2)]
def pfinit():
    e('s_lshr_b32 %s, s2, 3'%T0); e('s_lshl_b32 %s, %s, 3'%(T0,T0)); e('s_add_u32 %s, %s, %s'%(T0,T0,W)); e('v_bfrev_b32 v3, 2')
    for r,n in ((252,48),(253,40)):
        e('s_mul_i32 %s, %s, %d'%(T1,T0,16*n)); e('v_add_u32 v%d, %s, v14'%(r,T1)); e('v_cmp_gt_u32 vcc, %d, v1'%n); e('v_cndmask_b32 v%d, v3, v%d, vcc'%(r,r))
    e('s_lshl_b32 %s, %s, 11'%(T1,T0)); e('v_add_u32 v254, %s, v14'%T1)
def pf1():
    if pfl: r,b,so,o=pfl.pop(0); e('s_mov_b32 %s, %d'%(T3,so)); e('buffer_load_dwordx4 v[248:251], v%d, %s, %s offen offset:%d'%(r,b,T3,o))
def poll(name,voff,base,n=1):
    e('s_mov_b32 %s, 0'%SCNT); e('s_mov_b32 %s, %d'%(T3,base)); e.label('L_p'+name)
    for i in range(n): e('buffer_load_dwordx2 %s, v%d, %s, %s offen offset:%d sc1'%(v(244+2*i,2),voff,WS,T3,512*i))
    e('s_waitcnt vmcnt(0)')
    for i in range(n):
        e('v_cmp_ne_u64 vcc, s[6:7], %s'%v(244+2*i,2)); e.nop(4); e('s_cbranch_vccnz L_r'+name)
    e('s_branch L_q'+name); e.label('L_r'+name)
    e('s_sleep 1'); e('s_add_u32 %s, %s, 1'%(SCNT,SCNT)); e('s_cmp_lt_u32 %s, 0x40000'%SCNT); e('s_cbranch_scc1 L_p'+name); e.label('L_q'+name)
KF,QF,VF=16,52,56
KV=49152
def check(name,base,n):
    e('s_waitcnt vmcnt(%d)'%n); e('v_cmp_ne_u64 vcc, s[6:7], v[244:245]'); e.nop(4); e('s_cbranch_vccz L_q'+name); poll(name,6,base)
def p1():
    e('s_lshl_b32 %s, %s, 4'%(T0,RB)); e('s_sub_u32 %s, %s, 32'%(T0,T0)); e('v_min_u32 v6, 47, v1'); e('v_add_u32 v6, %s, v6'%T0); e('v_max_i32 v6, 0, v6'); e('v_lshlrev_b32 v6, 3, v6')
    e('s_mov_b32 %s, %d'%(T3,FL)); e('buffer_load_dwordx2 v[244:245], v6, %s, %s offen sc1'%(WS,T3))
def kvld(n=0):
    check('1',FL,n)
    e('s_lshl_b32 %s, %s, 21'%(T1,KH)); e('s_lshl_b32 %s, %s, 11'%(T0,CG)); e('s_add_u32 %s, %s, %s'%(T1,T1,T0)); e('s_add_u32 %s, %s, %d'%(T1,T1,KB))
    e('s_mul_i32 %s, %s, 24576'%(T2,KH)); e('s_lshl_b32 %s, %s, 11'%(T0,TG)); e('s_add_u32 %s, %s, %s'%(T2,T2,T0))
    for i in range(3):
        e('s_sub_i32 %s, %s, %d'%(T3,QBI,4*i)); e('s_max_i32 %s, %s, 0'%(T3,T3)); e('s_lshl_b32 %s, %s, 15'%(T3,T3)); e('s_add_u32 %s, %s, %s'%(T3,T3,T1))
        e('s_add_u32 m0, %s, %d'%(T2,KV+(2-i)*8192))
        for c in range(2): e('buffer_load_dwordx4 v14, %s, %s offen offset:%d%s lds'%(WS,T3,1024*c,'' if opt['nsc']>1 else ' sc1'))
def kvld2():
    check('1',FL,0); qld()
    e('s_lshl_b32 %s, %s, 10'%(T2,KH)); e('s_lshl_b32 %s, %s, 11'%(T0,CG)); e('s_add_u32 %s, %s, %s'%(T1,T2,T0))
    e('s_lshl_b32 %s, %s, 11'%(T0,TG)); e('s_add_u32 %s, %s, %s'%(T2,T2,T0))
    for kv in range(2):
        e('s_add_u32 %s, %s, %d'%(T1,T1,2<<20))
        for i in range(3):
            e('s_sub_i32 %s, %s, %d'%(T3,QBI,4*i)); e('s_max_i32 %s, %s, 0'%(T3,T3)); e('s_lshl_b32 %s, %s, 15'%(T3,T3)); e('s_add_u32 %s, %s, %s'%(T3,T3,T1))
            e('s_add_u32 m0, %s, %d'%(T2,KV+24576*kv+(2-i)*8192)); e('buffer_load_dwordx4 v14, %s, %s offen sc1 lds'%(WS,T3))
def qld():
    e('s_lshl_b32 %s, %s, 1'%(T1,CG)); e('s_add_u32 %s, %s, %s'%(T1,T1,KH)); e('s_lshl_b32 %s, %s, 10'%(T1,T1))
    e('s_lshl_b32 %s, %s, 15'%(T0,QBI)); e('s_add_u32 %s, %s, %s'%(T3,T0,T1)); e('buffer_load_dwordx4 %s, v14, %s, %s offen sc1'%(v(QF,4),WS,T3))
def sig(off,val,lbl):
    e('v_mov_b32 v3, %d'%(CNT+off)); e('v_mov_b32 v10, 1'); e('s_mov_b64 exec, 1'); e('ds_add_rtn_u32 v10, v3, v10'); e('s_waitcnt lgkmcnt(0)'); e('s_mov_b64 exec, -1')
    e('v_readfirstlane_b32 %s, v10'%T0); e('s_cmp_lg_u32 %s, 7'%T0); e('s_cbranch_scc1 L_'+lbl); flag(val); e.label('L_'+lbl)
REG=WQR+W1R
lq=[]
def xr(s): xread(s); lq.extend([('x',s)]*2)
def wr(s): wread(REG,s); lq.extend([('w',s)]*6)
def lwait(tags):
    idx=[i for i,t in enumerate(lq) if t in tags]
    if idx:
        n=len(lq)-1-max(idx); e('s_waitcnt lgkmcnt(%d)'%min(n,15)); del lq[:max(idx)+1]
xr(0); wr(0); xr(1); wr(1)
if opt['pr']: e('s_cmp_eq_u32 %s, 0'%KH); e('s_cbranch_scc1 L_pr'); e('s_setprio 1'); e.label('L_pr')
fill=[t for i in range(8,16) for t in norm(i,208)]
S,NM,MD,MF,O,P=80,128,144,204,160,224
fil2=['v_and_b32 v4, 31, v1','v_lshrrev_b32 v5, 5, v1','v_lshlrev_b32 v5, 2, v5','v_sub_u32 v4, v4, v5','v_mov_b32 v5, 0xf149f2ca']
for r in range(16): fil2+=['v_cmp_le_i32 vcc, %d, v4'%((r&3)+8*(r>>2)),'v_mov_b32 v%d, %s'%(VF+r,ONES),'v_cndmask_b32 v%d, v5, 0, vcc'%(MD+r),'v_cndmask_b32 v%d, 0, v5, vcc'%(MF+r)]
XS={0:[2,3,4],1:[5,6,7],6:[8,9],7:[10,11],8:[12],9:[13],10:[14],11:[15]}
for s in range(32):
    q=s<16; A=ACC if q else 220
    if s in (1,2,4,6,8,10,14): stamp(2)
    if s==2: lwait([('x',7)]); bar(nq[0]-6+TL)
    if s==6: lwait([('s',15)]); bar(3); assert nq[0]==12
    if s==10: bar(3)
    if s==14: lwait([('x',15)]); bar(3); e('v_mov_b32 v3, %d'%CNT); e('v_mov_b32 v10, 0'); e('ds_write_b32 v3, v10'); e('ds_write_b32 v3, v10 offset:4'); e('ds_write_b32 v3, v10 offset:8'); lq.extend([0,0,0])
    if s==18: bar(7)
    if s==opt['fs']<22: e('s_waitcnt vmcnt(%d)'%(3 if s>19 else 2)); sig(8,0,'f1')
    if s==22: bar(3+10-len(pfl))
    if s==22==opt['fs']: e('s_cmp_lg_u32 %s, 0'%W); e('s_cbranch_scc1 L_f1'); flag(0); e.label('L_f1')
    if s==26: bar(10-len(pfl))
    lwait([('w',s),('x',s)])
    if s<30 and not opt['il']: wr(s+2)
    if s<6 and not opt['il']: wnext()
    dm={6:(0,0),7:(0,1),8:(0,2),10:(1,0),11:(1,1),12:(1,2),14:(2,0),15:(2,1),16:(2,2),18:(3,1),19:(3,2)}
    if s in dm and not opt['il']: wdma(0,*dm[s])
    if s==opt['pe']: pfinit()
    if s==opt['p1']: p1()
    if s==opt['p1']+2: kvld()
    xs=list(XS.get(s,[]))
    for j in range(3):
        for T in range(2):
            a,b=v(WF+(s%3)*12+4*j,4),v(XF+8*(s&15)+4*T,4)
            if q and j==2: a,b=b,a
            e('v_mfma_f32_16x16x32_bf16 %s, %s, %s, %s'%(v(A+8*j+4*T,4),a,b,v(A+8*j+4*T,4) if s&15 else '0'))
            if opt['il']:
                if s<30: wread(REG,s+2,2*j+T); lq.append(('w',s+2))
                if j==1 and T==0:
                    if s<6: wnext()
                    if s in dm: wdma(0,*dm[s])
                    if s>=opt['pe'] and len(pfl)>10-opt['pn']: pf1()
            if s<4:
                for k in range(3 if j*2+T<4 else 2): e(fill.pop(0))
            if s>=24:
                for k in range(2):
                    if fil2: e(fil2.pop(0))
            if T==0 and xs: xr(xs.pop(0))
            if 2<=s<6 and T==1 and j<2: i=8+2*(s-2)+j; xwrite(i); lq.append(('s',i))
    if s==16:
        A=ACC
        e('s_and_b32 %s, %s, 1'%(T0,CG)); e('s_cmp_eq_u32 %s, 0'%T0); e('s_cselect_b32 %s, 0x3eb8aa3b, 1.0'%T1)
        for r in range(16): e('v_mul_f32 v%d, %s, v%d'%(ACC+r,T1,ACC+r))
        e('s_lshl_b32 %s, %s, 21'%(T0,T0)); e('s_lshl_b32 %s, %s, 15'%(T1,QBI)); e('s_add_u32 %s, %s, %s'%(T0,T0,T1))
        e('s_lshr_b32 %s, %s, 1'%(T3,CG)); e('s_lshl_b32 %s, %s, 2'%(T3,T3)); e('s_add_u32 %s, %s, %s'%(T3,T3,KH)); e('s_lshl_b32 %s, %s, 10'%(T3,T3)); e('s_add_u32 %s, %s, %s'%(T0,T0,T3))
        e('s_lshl_b32 %s, %s, 1'%(T3,CG)); e('s_add_u32 %s, %s, %s'%(T3,T3,KH)); e('s_lshl_b32 %s, %s, 10'%(T3,T3)); e('s_add_u32 %s, %s, %s'%(T1,T1,T3)); e('s_add_u32 %s, %s, %d'%(T1,T1,VB))
        for j in range(3):
            pack(j)
            if j<2: e('buffer_store_dwordx4 %s, v15, %s, %s offen offset:%d sc1'%(v(PK+4*j,4),WS,T0,2048*j))
            else: e('buffer_store_dwordx4 %s, v14, %s, %s offen sc1'%(v(PK+4*j,4),WS,T1))
        wdma(0,3,0)
    if s==15: stamp(3)
stamp(3)
A=220; EX=180; PK=168
e('s_mul_i32 %s, %s, 86'%(WQA,QBI)); e('s_lshr_b32 %s, %s, 5'%(T1,W1A)); e('s_add_u32 %s, %s, %s'%(WQA,WQA,T1)); e('s_add_u32 %s, %s, %s'%(WQA,WQA,KH)); e('s_lshl_b32 %s, %s, 10'%(WQA,WQA)); e('s_add_u32 %s, %s, %d'%(WQA,WQA,HB))
e('s_mov_b32 s4, 0xbfb8aa3b'); e('s_mov_b32 s5, 0xbfb8aa3b')
for j in range(3):
    if j==0 and opt['kf']: kvld2()
    elif j==opt['sj'] and not opt['kf']: kvld(j); qld()
    for r in range(0,8,2): e('v_pk_mul_f32 %s, %s, s[4:5]'%(v(EX+r,2),v(A+8*j+r,2)))
    for r in range(8): e('v_exp_f32 v%d, v%d'%(EX+r,EX+r))
    for r in range(0,8,2): e('v_pk_add_f32 %s, %s, 1.0 op_sel_hi:[1,0]'%(v(EX+r,2),v(EX+r,2)))
    for r in range(8): e('v_rcp_f32 v%d, v%d'%(EX+r,EX+r))
    for r in range(0,8,2): e('v_pk_mul_f32 %s, %s, %s'%(v(A+8*j+r,2),v(A+8*j+r,2),v(EX+r,2)))
    pack(j)
    if j==2: e('s_add_u32 %s, %s, 4096'%(WQA,WQA))
    e('buffer_store_dwordx4 %s, v15, %s, %s offen offset:%d sc1'%(v(PK+4*j,4),WS,WQA,2048*(j&1)))
stamp()
e('v_lshrrev_b32 v3, 2, v1'); e('v_and_b32 v10, 3, v1'); e('v_lshlrev_b32 v10, 4, v10'); e('v_lshl_add_u32 v8, v3, 10, v10')
e('s_mul_i32 %s, %s, 22'%(T5,KQ)); e('s_cmp_eq_u32 %s, 3'%KQ); e('s_subb_u32 %s, %s, 0'%(T5,T5))
e('s_add_u32 %s, %s, %s'%(T2,T5,TG2)); e('s_lshl_b32 %s, %s, 14'%(T2,T2)); e('s_lshl_b32 %s, %s, 7'%(T0,CB)); e('s_add_u32 %s, %s, %s'%(T2,T2,T0))
e('s_lshl_b32 %s, %s, 11'%(T4,KQ)); e('s_lshl_b32 %s, %s, 13'%(T0,TG2)); e('s_add_u32 %s, %s, %s'%(T4,T4,T0))
def slot(u): return ((u+12)%18)*8192
def w3dma(u):
    if u==22:
        e('s_lshl_b32 %s, %s, 3'%(T2,KQ)); e('s_add_u32 %s, %s, %s'%(T2,T2,TG2)); e('s_lshl_b32 %s, %s, 14'%(T2,T2)); e('s_lshl_b32 %s, %s, 7'%(T0,CB)); e('s_add_u32 %s, %s, %s'%(T2,T2,T0))
    for j in range(2):
        if opt['sg'] and 12<=u<18: e('buffer_load_dwordx4 %s, v8, %s, %s offen offset:%d'%(v(176+4*(u-12+j),4),W2,T2,64*j)); continue
        e('s_add_u32 m0, %s, %d'%(T4,slot(u)+960*j)); e('buffer_load_dwordx4 v8, %s, %s offen offset:%d lds'%(W2 if u<22 else WO,T2,64*j))
    e('s_add_u32 %s, %s, 32768'%(T2,T2))
def smf(d,c): e('v_mfma_f32_32x32x16_bf16 %s, %s, %s, %s'%(v(S+16*(d%3),16),v(KF+4*d,4),v(QF,4),c))
e('s_lshl_b32 %s, %s, 1'%(T0,TG)); e('s_add_u32 %s, %s, %s'%(T0,T0,KH)); e('s_lshl_b32 %s, %s, 10'%(T0,T0)); e('s_add_u32 %s, %s, %d'%(T0,T0,KV)); e('v_add_u32 v7, %s, v14'%T0)
e('v_lshrrev_b32 v3, 5, v1'); e('v_and_b32 v10, 15, v1'); e('v_lshlrev_b32 v10, 4, v10'); e('v_lshl_add_u32 v10, v3, 8, v10'); e('s_add_u32 %s, %s, 24576'%(T0,T0)); e('v_add_u32 v9, %s, v10'%T0)
bar(6 if opt['kf'] else 3-opt['sj']); stamp()
for d in range(9): e('ds_read_b128 %s, v7 offset:%d'%(v(KF+4*d,4),(8-d)*2048))
def vread(d):
    e('s_mov_b32 exec_lo, 0xffff'); e('s_mov_b32 exec_hi, 0xffff')
    for c in range(2): e('ds_read_b128 %s, v9 offset:%d'%(v(VF+8*(d&1)+4*c,4),(8-d)*2048+512*c))
    e('s_mov_b64 exec, -1')
n3=min(len(pfl),opt['pfp'])
for k in range(n3): pf1()
for u in range(0,2*opt['w0'],2): w3dma(u)
e('s_waitcnt lgkmcnt(0)')
c1=lambda d: v(MD,16) if d==0 else v(MF,16) if d==8 else '0'
smf(0,c1(0)); smf(1,c1(1))
for d in range(9):
    if d+2<9: smf(d+2,c1(d+2))
    b=S+16*(d%3)
    if d==0: e('v_max_f32 v4, v%d, v%d'%(b,b+1)); e('v_max_f32 v5, v%d, v%d'%(b+2,b+3))
    else: e('v_max3_f32 v4, v%d, v%d, v4'%(b,b+1)); e('v_max3_f32 v5, v%d, v%d, v5'%(b+2,b+3))
    for r in range(4,16,2): e('v_max3_f32 v%d, v%d, v%d, v%d'%(4+((r>>1)&1),b+r,b+r+1,4+((r>>1)&1)))
    if d<8: e('s_cmp_eq_u32 %s, %d'%(QBI,d)); e('s_cbranch_scc1 L_a1')
e.label('L_a1')
e('v_max_f32 v4, v4, v5'); e('v_mov_b32 v5, v4'); e('v_permlane32_swap_b32 v4, v5'); e('v_max_f32 v4, v4, v5')
e.nop(8)
for r in range(16): e('v_sub_f32 v%d, v%d, v4'%(MD+r,MD+r))
for r in range(16): e('v_sub_f32 v%d, 0, v4'%(NM+r))
for r in range(16): e('v_sub_f32 v%d, v%d, v4'%(MF+r,MF+r))
e('s_waitcnt vmcnt(%d)'%(2*opt['w0']+n3))
if opt['kf']: e('s_barrier'); e('s_cmp_lg_u32 %s, 0'%W); e('s_cbranch_scc1 L_f2'); flag(1); e.label('L_f2')
else: sig(0,1,'f2')
e('s_lshr_b32 %s, %s, 1'%(T0,RB2)); e('s_lshl_b32 %s, %s, 7'%(T0,T0)); e('v_and_b32 v6, 15, v1'); e('v_lshlrev_b32 v6, 3, v6'); e('v_add_u32 v6, %s, v6'%T0)
e('s_mov_b32 %s, %d'%(T1,FL+2048))
vread(0)
c2=lambda d: v(MD,16) if d==0 else v(MF,16) if d==8 else v(NM,16)
smf(0,c2(0))
for d in range(9):
    if d<8:
        e('s_cmp_lg_u32 %s, %d'%(QBI,d)); e('s_cbranch_scc1 L_m%d'%d)
        for r in range(16): e('v_mov_b32 v%d, 0xf149f2ca'%(NM+r)); e('v_mov_b32 v%d, 0xf149f2ca'%(MF+r))
        e.label('L_m%d'%d)
        smf(d+1,c2(d+1)); vread(d+1)
    if d+opt['w0']<6+3*opt['sg']: w3dma(2*(d+opt['w0']))
    pf1()
    if d==8: e('buffer_load_dwordx2 v[244:245], v6, %s, %s offen sc1'%(WS,T1))
    b=S+16*(d%3); p=P+8*(d&1)
    for c in range(2):
        for r in range(8): e('v_exp_f32 v%d, v%d'%(b+8*c+r,b+8*c+r))
        for r in range(4): e('v_cvt_pk_bf16_f32 v%d, v%d, v%d'%(p+4*c+r,b+8*c+2*r,b+8*c+2*r+1))
    e('s_waitcnt lgkmcnt(%d)'%(2 if d<8 else 0))
    for c in range(2): e('v_mfma_f32_32x32x16_bf16 %s, %s, %s, %s'%(v(O,16),v(VF+8*(d&1)+4*c,4),v(p+4*c,4),v(O,16) if d+c else '0'))

e('v_rcp_f32 v4, v%d'%(O+8))
for r in range(8): e('v_mul_f32 v%d, v%d, v4'%(O+r,O+r))
for r in range(4): e('v_cvt_pk_bf16_f32 v%d, v%d, v%d'%(240+r,O+2*r,O+2*r+1))
stamp()
e('s_lshl_b32 %s, %s, 5'%(T0,QBI)); e('s_lshl_b32 %s, %s, 1'%(T1,CG)); e('s_add_u32 %s, %s, %s'%(T0,T0,T1)); e('s_add_u32 %s, %s, %s'%(T0,T0,KH)); e('s_lshl_b32 %s, %s, 10'%(T0,T0)); e('s_add_u32 %s, %s, %d'%(T0,T0,OB))
e('buffer_store_dwordx4 %s, v14, %s, %s offen sc1'%(v(240,4),WS,T0))
HF,A3,W3,XR=16,136,208,204
HS,OS=WQA,WQB
e('s_lshl_b32 %s, %s, 1'%(T1,RB2)); e('s_add_u32 %s, %s, %s'%(T1,T1,TG2))
e('s_mul_i32 %s, %s, 86'%(HS,T1)); e('s_add_u32 %s, %s, %s'%(HS,HS,T5)); e('s_lshl_b32 %s, %s, 10'%(HS,HS)); e('s_add_u32 %s, %s, %d'%(HS,HS,HB))
e('s_lshl_b32 %s, %s, 5'%(OS,T1)); e('s_lshl_b32 %s, %s, 3'%(T3,KQ)); e('s_add_u32 %s, %s, %s'%(OS,OS,T3)); e('s_lshl_b32 %s, %s, 10'%(OS,OS)); e('s_add_u32 %s, %s, %d'%(OS,OS,OB))
if opt['fin']==0: e('v_lshrrev_b32 v3, 3, v0'); e('v_and_b32 v10, 7, v0'); e('v_lshlrev_b32 v10, 4, v10'); e('v_lshl_add_u32 v9, v3, 10, v10')
else: e('v_and_b32 v3, 31, v1'); e('v_lshrrev_b32 v10, 5, v1'); e('v_lshlrev_b32 v10, 4, v10'); e('v_lshl_add_u32 v9, v3, 10, v10'); e('s_lshl_b32 %s, %s, 15'%(T0,TG2)); e('s_lshl_b32 %s, %s, 5'%(T3,KQ)); e('s_add_u32 %s, %s, %s'%(T0,T0,T3)); e('v_add_u32 v9, %s, v9'%T0)
e('v_lshrrev_b32 v10, 5, v1'); e('v_bfe_u32 v3, v1, 2, 2'); e('v_lshl_add_u32 v3, v10, 2, v3'); e('v_lshlrev_b32 v3, 6, v3')
e('v_and_b32 v11, 16, v1'); e('v_lshl_add_u32 v3, v11, 1, v3'); e('v_and_b32 v11, 3, v1'); e('v_lshl_add_u32 v3, v11, 3, v3')
e('s_lshl_b32 %s, %s, 11'%(T0,KQ)); e('v_add_u32 v11, %s, v3'%T0); e('v_add_u32 v12, 49152, v11'); e('v_add_u32 v13, 98304, v11')
check('2',FL+2048,1); stamp()
vq=['o']
def vw(tags,extra=''):
    idx=[i for i,t in enumerate(vq) if t in tags]
    if idx: n=len(vq)-1-max(idx); del vq[:max(idx)+1]; e('s_waitcnt vmcnt(%d) %s'%(n,extra))
    elif extra: e('s_waitcnt '+extra)
def ald(u):
    k=u if u<22 else u-22; r=HS if u<22 else OS
    e('buffer_load_dwordx4 %s, v14, %s, %s offen offset:%d%s'%(v(HF+4*u,4),WS,r,1024*(k&3),'' if opt['nsc'] else ' sc1')); vq.append(('a',u))
    if k&3==3: e('s_add_u32 %s, %s, 4096'%(r,r))
def w3d(u): w3dma(u); vq.extend([('w',u)]*2)
LA=opt['la']
if opt['hp']:
    e('s_lshl_b32 %s, %s, 11'%(T0,CB)); e('s_add_u32 %s, %s, %s'%(T0,T0,HS)); e('s_add_u32 %s, %s, 6144'%(T0,T0))
    for k in range(2): e('buffer_load_dwordx4 v[248:251], v14, %s, %s offen offset:%d%s'%(WS,T0,1024*k,'' if opt['nsc'] else ' sc1')); vq.append('pf')
for u in range(LA): ald(u)
e('s_barrier'); stamp()
def w3read(u):
    a=slot(u); b=VR0+a//49152; a%=49152
    for j in range(2):
        for jj in range(2): e('ds_read_b64_tr_b16 %s, v%d offset:%d'%(v(W3+(u%3)*8+4*j+2*jj,2),b,a+1024*j+512*jj))
w3read(0); w3read(1)
if opt['sg']:
    e('v_add_u32 v7, %s, v14'%T4); e('v_add_u32 v7, %d, v7'%slot(12))
    for k in range(6): e('ds_write_b128 v7, %s offset:%d'%(v(176+4*k,4),16384*(k>>1)+1024*(k&1)))
WD={1:12,3:14,5:16,6:18,8:20,10:22,16:24,17:26,18:28}
na=[LA]; PU=opt['pu']
for u in range(30):
    if u==6: e('s_barrier')
    if u==10 and not opt['sg']: vw([('w',16)]); e('s_barrier')
    if u==16: vw([('w',22)]); e('s_barrier'); stamp()
    if u==22: vw([('w',28)]); e('s_barrier'); stamp()
    if u==26 and opt['fin']: e('s_barrier')
    if u==29:
        vw(['x'])
        if opt['fin']:
            for r in range(2): e('v_permlane32_swap_b32 v%d, v%d'%(XR+r,XR+2+r))
    if u==PU-2: e('s_mov_b32 %s, %d'%(T1,FL+4096)); e('buffer_load_dwordx2 v[244:245], v6, %s, %s offen sc1'%(WS,T1)); vq.append('p')
    if u==PU: n=len(vq)-1-vq.index('p'); del vq[:vq.index('p')+1]; check('3',FL+4096,n)
    if u+2<30: w3read(u+2)
    if u in WD and not (opt['sg'] and u<6): w3d(WD[u])
    for k in range(2 if u>=PU else 1):
        if na[0]<(30 if u>=PU else 22): ald(na[0]); na[0]+=1
    if u==20:
        e('s_lshl_b32 %s, %s, 16'%(T3,RB2)); e('s_lshl_b32 %s, %s, 7'%(T0,CB)); e('s_add_u32 %s, %s, %s'%(T3,T3,T0))
        e('buffer_load_dwordx4 %s, v9, %s, %s offen'%(v(XR,4),X,T3)); vq.append('x')
    lg=8 if u+2<30 else 4 if u+1<30 else 0
    vw([('a',u)],'lgkmcnt(%d)'%lg)
    if u==21: e('s_cmp_ge_u32 %s, 2'%KQ); e('s_cbranch_scc1 L_s21')
    for j in range(2): e('v_mfma_f32_32x32x16_bf16 %s, %s, %s, %s'%(v(A3+16*j,16),v(W3+(u%3)*8+4*j,4),v(HF+4*u,4),v(A3+16*j,16) if u else '0'))
    if u==21: e.label('L_s21')
    if u==0: sig(4,2,'f3')
    if u==2:
        e('s_or_b32 %s, %s, %s'%(T0,SID,W)); e('s_cmp_lg_u32 %s, 0'%T0); e('s_cbranch_scc1 L_noep')
        e('v_lshlrev_b32 v7, 3, v1'); poll('e',7,FL,4)
        e('v_mov_b32 v4, s6'); e('v_mov_b32 v5, s7'); e('v_mov_b32 v3, 0'); e('s_mov_b32 %s, %d'%(T0,EP)); e('s_mov_b64 exec, 1'); e('buffer_store_dwordx2 v[4:5], v3, %s, %s offen sc1'%(WS,T0)); e('s_mov_b64 exec, -1')
        e.label('L_noep')
stamp()
if opt['fin']==0:
    e('s_barrier')
    e('s_mul_i32 %s, %s, 17408'%(T0,KQ)); e('s_mul_i32 %s, %s, 8704'%(T3,TG2)); e('s_add_u32 %s, %s, %s'%(T0,T0,T3))
    e('v_and_b32 v3, 31, v1'); e('v_mul_u32_u24 v3, 272, v3'); e('v_lshrrev_b32 v10, 5, v1'); e('v_lshl_add_u32 v3, v10, 4, v3'); e('v_add_u32 v3, %s, v3'%T0)
    for j in range(2):
        for q in range(4): e('ds_write_b128 v3, %s offset:%d'%(v(A3+16*j+4*q,4),128*j+32*q))
    e('v_lshrrev_b32 v3, 3, v0'); e('v_mul_u32_u24 v3, 272, v3'); e('v_and_b32 v10, 7, v0'); e('v_lshl_add_u32 v3, v10, 5, v3')
    for r in range(4): e('v_lshlrev_b32 v%d, 16, v%d'%(64+2*r,XR+r)); e('v_and_b32 v%d, 0xffff0000, v%d'%(65+2*r,XR+r))
    e('s_waitcnt lgkmcnt(0)'); e('s_barrier')
    for k in range(4):
        for i in range(2): e('ds_read_b128 %s, v3 offset:%d'%(v(16+8*k+4*i,4),17408*k+16*i))
    for k in range(4):
        e('s_waitcnt lgkmcnt(%d)'%(6-2*k))
        for r in range(8): e('v_add_f32 v%d, v%d, v%d'%(64+r,64+r,16+8*k+r))
    for r in range(4): e('v_cvt_pk_bf16_f32 v%d, v%d, v%d'%(72+r,64+2*r,65+2*r))
    e('s_lshl_b32 %s, %s, 16'%(T3,RB2)); e('s_lshl_b32 %s, %s, 7'%(T0,CB)); e('s_add_u32 %s, %s, %s'%(T3,T3,T0))
    e('buffer_store_dwordx4 v[72:75], v9, %s, %s offen'%(OUT,T3))
else:
    FB=98304
    e('s_lshl_b32 %s, %s, 11'%(T0,W)); e('s_add_u32 %s, %s, %d'%(T0,T0,FB)); e('v_add_u32 v3, %s, v14'%T0); e.nop(16)
    for k in range(4):
        e('s_cmp_eq_u32 %s, %d'%(KQ,k)); e('s_cbranch_scc1 L_o%d'%k)
        for i in range(2): e('ds_write_b128 v3, %s offset:%d'%(v(A3+8*k+4*i,4),16384*k+1024*i))
        e('s_branch L_n%d'%k); e.label('L_o%d'%k)
        for r in range(4):
            e('v_lshlrev_b32 v%d, 16, v%d'%(64+2*r,XR+r)); e('v_and_b32 v%d, 0xffff0000, v%d'%(65+2*r,XR+r))
            e('v_pk_add_f32 %s, %s, %s'%(v(64+2*r,2),v(64+2*r,2),v(A3+8*k+2*r,2)))
        e.label('L_n%d'%k)
    e('s_lshl_b32 %s, %s, 14'%(T0,KQ)); e('s_add_u32 %s, %s, %d'%(T0,T0,FB))
    for k in range(1,4):
        e('s_add_u32 %s, %s, %d'%(T1,W,2*k)); e('s_and_b32 %s, %s, 7'%(T1,T1)); e('s_lshl_b32 %s, %s, 11'%(T1,T1)); e('s_add_u32 %s, %s, %s'%(T1,T1,T0)); e('v_add_u32 v%d, %s, v14'%(3+k,T1))
    e('s_waitcnt lgkmcnt(0)'); e('s_barrier')
    for k in range(1,4):
        for i in range(2): e('ds_read_b128 %s, v%d offset:%d'%(v(16+8*k+4*i,4),3+k,1024*i))
    for k in range(1,4):
        e('s_waitcnt lgkmcnt(%d)'%(6-2*k))
        for r in range(4): e('v_pk_add_f32 %s, %s, %s'%(v(64+2*r,2),v(64+2*r,2),v(16+8*k+2*r,2)))
    for r in range(4): e('v_cvt_pk_bf16_f32 v%d, v%d, v%d'%(72+r,64+2*r,65+2*r))
    for r in range(2): e('v_permlane32_swap_b32 v%d, v%d'%(72+r,74+r))
    e('s_lshl_b32 %s, %s, 16'%(T3,RB2)); e('s_lshl_b32 %s, %s, 7'%(T0,CB)); e('s_add_u32 %s, %s, %s'%(T3,T3,T0))
    e('buffer_store_dwordx4 v[72:75], v9, %s, %s offen %s'%(OUT,T3,['','sc1','nt','sc0 sc1'][opt['ost']]))
if opt['stamp']:
    stamp(3); e('s_memrealtime s[62:63]'); e('s_waitcnt lgkmcnt(0)')
    e('s_lshl_b32 %s, s2, 3'%T0); e('s_add_u32 %s, %s, %s'%(T0,T0,W)); e('s_lshl_b32 %s, %s, 7'%(T0,T0)); e('s_add_u32 %s, %s, %d'%(T0,T0,15<<20))
    e('v_mov_b32 v3, 0'); e('s_mov_b64 exec, 1')
    for i in range(nst[0]+2):
        e('v_mov_b32 v10, s%d'%(60+2*i)); e('buffer_store_dword v10, v3, %s, %s offen offset:%d'%(WS,T0,4*i))
e.label('L_end'); e('s_endpgm')
hdr=open('cdna_kernels/%s.s.ref'%NAME).read().split('; Override')[0]
txt=hdr+'''; @launch grid=(256,1,1) block=(512,1,1) lds=163840
.amdgcn_target "amdgcn-amd-amdhsa--gfx950"
.text
.globl %s_kernel
.p2align 8
.type %s_kernel,@function
%s_kernel:
'''%(NAME,NAME,NAME)+e.text()+'''.section .rodata,"a"
.p2align 6
.amdhsa_kernel %s_kernel
  .amdhsa_next_free_vgpr 256
  .amdhsa_next_free_sgpr 102
  .amdhsa_accum_offset 256
  .amdhsa_group_segment_fixed_size 0
  .amdhsa_kernarg_size 72
  .amdhsa_user_sgpr_count 2
  .amdhsa_user_sgpr_kernarg_segment_ptr 1
  .amdhsa_system_sgpr_workgroup_id_x 1
.end_amdhsa_kernel
'''%NAME
open(sys.argv[1],'w').write(txt)
```
